```python
import torch

def _softmax(x, axis=-1):
    return torch.softmax(x, dim=axis)
def _gelu(x):
    return torch.nn.functional.gelu(x, approximate="tanh")
def _silu(x):
    return torch.nn.functional.silu(x)
def _sigmoid(x):
    return torch.sigmoid(x)
def _layernorm(x, axis=-1, eps=1e-5):
    m = x.mean(dim=axis, keepdim=True)
    v = x.var(dim=axis, keepdim=True, unbiased=False)
    return (x - m) / torch.sqrt(v + eps)
def _scatter_add(tgt, idx, src, axis=0):
    return tgt.clone().index_add_(axis, idx, src)
def _segment_sum(src, seg, n):
    out = torch.zeros((n,) + src.shape[1:], dtype=src.dtype)
    return out.index_add_(0, seg, src)
def _pad(x, pw):
    flat = tuple(v for pair in reversed(pw) for v in pair)
    return torch.nn.functional.pad(x, flat)

kernel_name = 'standalone__mha_softmax__near_ridge'

def setup_inputs():

    _w = (lambda a: (lambda t: t.to(torch.bfloat16) if t.is_floating_point() else t)(torch.as_tensor(a)))
    B, H, Sq, Sk, D = 16, 16, 512, 512, 256
    return {
        "q": _w((lambda *s: torch.randn(*s, dtype=torch.bfloat16) * 0.8)(B, H, Sq, D)),
        "k": _w((lambda *s: torch.randn(*s, dtype=torch.bfloat16) * 0.8)(B, H, Sk, D)),
        "v": _w((lambda *s: torch.randn(*s, dtype=torch.bfloat16) * 0.05)(B, H, Sk, D)),
    }

def reference(q, k, v):
    scale = q.shape[-1] ** -0.5
    scores = torch.einsum("bhqd,bhkd->bhqk", q, k) * scale
    p = _softmax(scores, axis=-1)
    return torch.einsum("bhqk,bhkd->bhqd", p, v)
```

```python
import re

REG_RE = re.compile(r'^(-|\|)?([vas])(\d+)\|?$')
RNG_RE = re.compile(r'^([vas])\[(\d+):(\d+)\]$')

def regs_of(tok):
    tok = tok.strip()
    if tok.startswith('-'):
        tok = tok[1:]
    if tok.startswith('abs(') and tok.endswith(')'):
        tok = tok[4:-1]
    m = RNG_RE.match(tok)
    if m:
        return [(m.group(1), i) for i in range(int(m.group(2)), int(m.group(3)) + 1)]
    m = re.match(r'^([vas])(\d+)$', tok)
    if m:
        return [(m.group(1), int(m.group(2)))]
    if tok in ('vcc', 'm0', 'exec', 'scc'):
        return [(tok, 0)]
    return []

TRANS = ('v_exp_f32', 'v_log_f32', 'v_rcp_f32', 'v_rsq_f32', 'v_sqrt_f32')

class I:
    __slots__ = ('text', 'kind', 'rd', 'wr', 'meta', 'op', 'n', 'srcc')
    def __init__(self, text, meta=None):
        self.text = text
        self.meta = meta or {}
        self.n = None
        self.srcc = []
        t = text.split(';')[0].strip()
        if t.endswith(':'):
            self.kind = 'label'; self.op = None; self.rd = []; self.wr = []
            return
        parts = t.split(None, 1)
        op = parts[0]
        self.op = op
        rest = parts[1] if len(parts) > 1 else ''
        ops = [o.strip() for o in rest.split(',')] if rest else []
        if ops:
            last = ops[-1].split()
            ops[-1] = last[0] if last else ''
            self_mods = last[1:]
        else:
            self_mods = []
        rd, wr = [], []
        base = re.sub(r'_(e32|e64)$', '', op)
        if op.startswith('PSEUDO'):
            self.kind = 'pseudo'
        elif op.startswith('v_mfma'):
            self.kind = 'mfma'
            wr = regs_of(ops[0]); rd = regs_of(ops[1]) + regs_of(ops[2]); self.srcc = regs_of(ops[3])
        elif base.startswith('v_cmp'):
            self.kind = 'valu'
            wr = regs_of(ops[0]); rd = sum((regs_of(o) for o in ops[1:]), [])
        elif base in ('v_permlane32_swap_b32', 'v_permlane16_swap_b32'):
            self.kind = 'valu'
            wr = regs_of(ops[0]) + regs_of(ops[1]); rd = list(wr)
        elif base in ('v_fmac_f32',):
            self.kind = 'valu'
            wr = regs_of(ops[0]); rd = sum((regs_of(o) for o in ops), [])
        elif base.startswith('v_'):
            self.kind = 'trans' if base in TRANS else 'valu'
            wr = regs_of(ops[0]); rd = sum((regs_of(o) for o in ops[1:]), [])
            if base == 'v_cndmask_b32' and len(ops) == 3:
                rd.append(('vcc', 0))
        elif op.startswith('ds_read'):
            self.kind = 'ds'
            wr = regs_of(ops[0]); rd = regs_of(ops[1])
        elif op.startswith('ds_write'):
            self.kind = 'dsw'
            rd = sum((regs_of(o) for o in ops), [])
        elif op == 'buffer_wbl2':
            self.kind = 'salu'
        elif op.startswith('buffer_load') and 'lds' in self_mods:
            self.kind = 'dma'
            rd = sum((regs_of(o) for o in ops), []) + [('m0', 0)]
        elif op.startswith('buffer_load') or op.startswith('global_load'):
            self.kind = 'vload'
            wr = regs_of(ops[0]); rd = sum((regs_of(o) for o in ops[1:]), [])
        elif op.startswith('buffer_store') or op.startswith('global_store'):
            self.kind = 'vstore'
            rd = sum((regs_of(o) for o in ops), [])
        elif op in ('s_waitcnt', 's_barrier', 's_nop', 's_endpgm', 's_setprio', 's_sleep'):
            self.kind = {'s_waitcnt': 'wait', 's_barrier': 'barrier', 's_nop': 'nop'}.get(op, 'salu')
            if op == 's_nop':
                self.n = int(ops[0], 0) + 1
        elif op.startswith('s_cbranch') or op in ('s_branch', 's_setpc_b64', 's_call_b64', 's_swappc_b64'):
            self.kind = 'branch'
            if 'scc' in op: rd = [('scc', 0)]
            if 'vcc' in op: rd = [('vcc', 0)]
            if op == 's_call_b64': wr = regs_of(ops[0])
            if op == 's_setpc_b64': rd = regs_of(ops[0])
        elif op.startswith('s_cmp') or op.startswith('s_bitcmp'):
            self.kind = 'salu'
            rd = sum((regs_of(o) for o in ops), []); wr = [('scc', 0)]
        elif op.startswith('s_load') or op in ('s_memtime', 's_memrealtime'):
            self.kind = 'smem'
            wr = regs_of(ops[0]); rd = sum((regs_of(o) for o in ops[1:]), [])
        elif op.startswith('s_'):
            self.kind = 'salu'
            wr = regs_of(ops[0]); rd = sum((regs_of(o) for o in ops[1:]), [])
            if op.startswith('s_cselect') or op in ('s_addc_u32', 's_subb_u32'):
                rd.append(('scc', 0))
            if op in ('s_add_u32', 's_sub_u32', 's_addc_u32', 's_subb_u32', 's_lshl_b32', 's_lshr_b32', 's_and_b32', 's_or_b32', 's_xor_b32', 's_add_i32', 's_min_u32', 's_max_u32'):
                wr.append(('scc', 0))
        elif op.startswith('.'):
            self.kind = 'dir'
        else:
            raise ValueError("unknown instr: " + text)
        self.rd = rd; self.wr = wr

    def __repr__(self):
        return self.text

def waitlds(regs):
    i = I('PSEUDO_WAITLDS'); i.meta = {'regs': list(regs), 'N': None}; return i

def waitvm(tiles):
    i = I('PSEUDO_WAITVM'); i.meta = {'tiles': list(tiles), 'N': None}; return i

LG_MAX = 15
VM_MAX = 63

def resolve(trace, verbose=False):
    for final in (False, True):
        lq = []
        vq = []
        pend = {}
        tile_state = {}
        slot_owner = {}
        wn = 0
        errors = []
        for blk, ctx in trace:
            for ins in blk:
                k = ins.kind
                if k == 'pseudo':
                    if ins.op == 'PSEUDO_WAITLDS':
                        regs = set(ins.meta['regs'])
                        idx = -1
                        for p, (dst, tl) in enumerate(lq):
                            if regs & set(dst): idx = p
                        need = None if idx < 0 else len(lq) - 1 - idx
                        if not final:
                            if need is not None:
                                need = min(need, LG_MAX)
                                ins.meta['N'] = need if ins.meta['N'] is None else min(ins.meta['N'], need)
                        N = ins.meta['N'] if final else need
                        if N is not None:
                            while len(lq) > N:
                                dst, tl = lq.pop(0)
                                if tl is not None: tile_state[tl]['reads_out'] -= 1
                    elif ins.op == 'PSEUDO_WAITVM':
                        tiles = set(ctx['tile'](t) for t in ins.meta['tiles'])
                        idx = -1
                        for p, tag in enumerate(vq):
                            if tag in tiles: idx = p
                        need = None if idx < 0 else len(vq) - 1 - idx
                        if not final:
                            if need is not None:
                                need = min(need, VM_MAX)
                                ins.meta['N'] = need if ins.meta['N'] is None else min(ins.meta['N'], need)
                        N = ins.meta['N'] if final else need
                        if N is not None:
                            while len(vq) > N: vq.pop(0)
                        for t in tiles:
                            if t in tile_state and t not in vq:
                                tile_state[t]['waited'] = True
                    continue
                if k == 'wait':
                    m = re.search(r'lgkmcnt\((\d+)\)', ins.text)
                    if m:
                        while len(lq) > int(m.group(1)):
                            dst, tl = lq.pop(0)
                            if tl is not None: tile_state[tl]['reads_out'] -= 1
                    m = re.search(r'vmcnt\((\d+)\)', ins.text)
                    if m:
                        while len(vq) > int(m.group(1)): vq.pop(0)
                        for t, st in tile_state.items():
                            if st['pieces'] == 4 and t not in vq: st['waited'] = True
                    continue
                if k == 'barrier':
                    for t, st in tile_state.items():
                        if st['waited']: st['certified'] = True
                        if st.get('done_reading') and st['reads_out'] == 0: st['released'] = True
                    continue
                if 'reserve' in ins.meta:
                    tl = ctx['tile'](ins.meta['reserve'])
                    slot = wn % 9; wn += 1
                    prev = slot_owner.get(slot)
                    if prev is not None:
                        pst = tile_state[prev]
                        if final and not pst.get('released') and not pst.get('dummy'):
                            errors.append(f"reservation {tl} takes slot {slot} still owned by {prev} ctx={ctx.get('name')}")
                        pst['overwritten'] = True
                    slot_owner[slot] = tl
                    tile_state[tl] = dict(pieces=4, waited=True, certified=True, reads_out=0, slot=slot)
                if final and k not in ('label', 'dir'):
                    outst = set()
                    for dst, tl in lq: outst |= set(dst)
                    bad = outst & (set(ins.rd) | set(ins.srcc) | (set(ins.wr) if k != 'ds' else set()))
                    if bad: errors.append(f"LDS result not waited: {ins.text} {sorted(bad)[:4]} ctx={ctx.get('name')}")
                if k == 'ds':
                    tl = None
                    if 'tile' in ins.meta:
                        tl = ctx['tile'](ins.meta['tile'])
                        st = tile_state.get(tl)
                        if final:
                            if st is None or not st['certified']:
                                errors.append(f"read of uncertified tile {tl}: {ins.text} ctx={ctx.get('name')}")
                            if st is not None and st.get('overwritten'):
                                errors.append(f"read of overwritten tile {tl}: {ins.text}")
                        if st is None:
                            st = tile_state.setdefault(tl, dict(pieces=4, waited=True, certified=True, reads_out=0))
                        st['reads_out'] += 1
                        if ins.meta.get('last'): st['done_reading'] = True
                    lq.append((list(ins.wr), tl))
                elif k == 'dsw':
                    lq.append(([], None))
                elif k == 'dma':
                    tl = ctx['tile'](ins.meta['tile'])
                    if ins.meta.get('piece') == 0:
                        slot = wn % 9; wn += 1
                        prev = slot_owner.get(slot)
                        if prev is not None:
                            pst = tile_state[prev]
                            if final and not pst.get('released') and not pst.get('dummy'):
                                errors.append(f"DMA of {tl} into slot {slot} still owned by {prev} ctx={ctx.get('name')}")
                            pst['overwritten'] = True
                        slot_owner[slot] = tl
                        tile_state[tl] = dict(pieces=0, waited=False, certified=False, reads_out=0, slot=slot, dummy=ctx.get('dummy', lambda t: False)(tl))
                    tile_state[tl]['pieces'] += 1
                    vq.append(tl)
                    if final and len(vq) > 63: errors.append(f"vmcnt overflow {len(vq)} at {ins.text} ctx={ctx.get('name')}")
                elif k in ('vload', 'vstore'):
                    vq.append(('other', id(ins)))
                    if final and len(vq) > 63: errors.append(f"vmcnt overflow {len(vq)} at {ins.text} ctx={ctx.get('name')}")
                if 'release' in ins.meta:
                    pass
        if final:
            return errors, tile_state

def expand(blk):
    out = []
    for ins in blk:
        if ins.kind == 'pseudo':
            N = ins.meta['N']
            if N is None: continue
            if ins.op == 'PSEUDO_WAITLDS': out.append(I(f's_waitcnt lgkmcnt({N})'))
            else: out.append(I(f's_waitcnt vmcnt({N})'))
        else:
            out.append(ins)
    return out

def hazards(seq, name=''):
    errs = []
    last = {}
    pos = 0
    def dist(key):
        return None if key not in last else pos - last[key] - 1
    for ins in seq:
        k = ins.kind
        if k in ('label', 'dir', 'pseudo'): continue
        def need(key, n, why):
            d = dist(key)
            if d is not None and d < n:
                errs.append(f"[{name}] {why}: need {n} have {d}: {ins.text}")
        isvalu = k in ('valu', 'trans')
        if k == 'mfma':
            for r in ins.rd + ins.srcc:
                need(('valuw', r), 2, 'VALU write -> MFMA read')
            for r in ins.rd:
                need(('mfmaw', r), last.get(('mfmaP', r), 12), 'MFMA D -> MFMA A/B')
            for r in ins.srcc:
                d = dist(('mfmaw', r))
                if d is not None and d < last.get(('mfmaP', r), 12) - 2:
                    if last.get(('mfmaD', r)) != tuple(ins.srcc):
                        errs.append(f"[{name}] MFMA D -> SrcC overlap: {ins.text}")
        if isvalu:
            for r in ins.rd + ins.wr:
                need(('mfmaw', r), last.get(('mfmaP', r), 12), 'MFMA D -> VALU')
            for r in ins.wr:
                need(('mfmac', r), last.get(('mfmaCP', r), 7), 'MFMA SrcC read -> VALU write')
                need(('stdata', r), 2, 'store data WAR')
            if k == 'valu':
                for r in ins.rd:
                    need(('transw', r), 1, 'trans -> VALU')
            for r in ins.rd:
                if r[0] in ('s', 'vcc'):
                    need(('valusw', r), 2, 'VALU sgpr write -> VALU read')
            if ins.op.startswith('v_permlane'):
                for r in ins.rd: need(('valuw', r), 2, 'VALU -> permlane')
            if ins.op.startswith('v_readfirstlane') or ins.op.startswith('v_readlane'):
                for r in ins.rd: need(('valuw', r), 1, 'VALU -> readlane')
        if k in ('ds', 'dsw', 'dma', 'vload', 'vstore'):
            for r in ins.rd:
                need(('mfmaw', r), last.get(('mfmaP', r), 12), 'MFMA D -> mem read')
                if r[0] == 's': need(('valusw', r), 5, 'VALU sgpr -> VMEM')
            for r in ins.wr:
                need(('mfmaw', r), last.get(('mfmaP', r), 12), 'MFMA D -> load dest')
                need(('stdata', r), 1, 'store data WAR(load)')
            if k == 'dma':
                need(('m0w', 0), 1, 'M0 write -> DMA')
        if k == 'mfma':
            p4 = '16x16x32' in ins.op
            for r in ins.wr:
                last[('mfmaw', r)] = pos; last[('mfmaD', r)] = tuple(ins.wr); last[('mfmaP', r)] = 8 if p4 else 12
            for r in ins.srcc:
                last[('mfmac', r)] = pos; last[('mfmaCP', r)] = 3 if p4 else 7
        if isvalu:
            for r in ins.wr:
                if r[0] in ('v', 'a'):
                    last[('valuw', r)] = pos
                    if k == 'trans': last[('transw', r)] = pos
                    else: last.pop(('transw', r), None)
                    last.pop(('mfmaw', r), None)
                else:
                    last[('valusw', r)] = pos
        if k == 'vstore':
            for r in ins.rd[:4]: last[('stdata', r)] = pos
        if k == 'salu':
            for r in ins.wr:
                if r == ('m0', 0): last[('m0w', 0)] = pos
                last.pop(('valusw', r), None)
        pos += ins.n if k == 'nop' else 1
    return errs
```

```python
import sys, json
from asmlib import I, waitlds, waitvm, resolve, expand, hazards

NAME = 'standalone__mha_softmax__near_ridge_kernel'
T = 16640
NS = 9
RING = T * NS
STG = RING
LDS_BYTES = RING + 8192
ITEM_STRIDE = 128 * 262144
TENSOR_BYTES = 256 * 262144

vKl, vVl, vK, vV = 1, 2, 3, 4
vD = [5, 6, 7, 8]
vO = [9, 10]
vSR = [11, 122]
vNM = [12, 13, 14, 15]
vL = [16, 17, 18, 19]
vXM = 20
vT = 21
SB = [24, 56]
PB = 88
FB = [104, 108, 112, 116]
vSW = [120, 121]
OLO = 128
vTK, vTV, vTQ, vJ = 123, 125, 22, 23
sTK, sTV, sTt = 81, 82, 83
sWb = 87
sPark = 89
sKW = 90
vKW = 123
vPK = [22, 23]
vPT = 124
sQ, sK, sV, sO = 4, 8, 12, 16
sW, sC, sItem = 20, 21, 22
sOffQ, sOffK, sOffV = 23, 24, 25
sRP, sWP, sWL = 28, 29, 30
sTw = 31
sCnt, sT0, sT1 = 32, 33, 34
sThr = 35
sRet = 36
sTT, sRING = 38, 39
sP = 40
sTr = 48
sOO = [76, 77, 78, 79]
sWT = 80

def srd(b): return f's[{b}:{b+3}]'
def vr(b, n): return f'v[{b}:{b+n-1}]' if n > 1 else f'v{b}'
def ar(b, n): return f'a[{b}:{b+n-1}]' if n > 1 else f'a{b}'
def Qreg(b, ks): return ar((b * 8 + ks) * 4, 4)
def Obase(d16, b):
    if d16 < 8: return ('v', OLO + (d16 * 4 + b) * 4)
    return ('a', 128 + ((d16 - 8) * 4 + b) * 4)
def Oreg(d16, b):
    f, r = Obase(d16, b)
    return vr(r, 4) if f == 'v' else ar(r, 4)
def Sreg(buf, b): return SB[buf] + b * 8
def regs(file, b, n): return [(file, i) for i in range(b, b + n)]
PI = [0, 2, 1, 3]

class Gaps:
    def __init__(self, n, cap=2):
        self.n = n; self.cap = cap
        self.mf = [None] * n
        self.sh = [[] for _ in range(n)]
        self.fx = [[] for _ in range(n)]
        self.fl = [[] for _ in range(n)]
        self.cost = [0] * n
    def fixed(self, g, ins, c=1):
        self.fx[g].append(ins); self.cost[g] += c
    def scalar(self, ins, g0):
        g = g0
        while g < self.n:
            if not self.sh[g]:
                self.sh[g].append(ins); return g
            g += 1
        g = min(g0, self.n - 1)
        self.sh[g].append(ins)
        return g
    def place(self, ins, g0, c=1, cap=None, fixed=False):
        g = g0
        while g < self.n - 1 and self.cost[g] + c > (cap or (self.cap if self.mf[g] is not None else 4)): g += 1
        (self.fx if fixed else self.fl)[g].append(ins); self.cost[g] += c
        return g
    def emit(self):
        out = []
        for g in range(self.n):
            fl = self.fl[g]
            if self.mf[g] is not None: out.append(self.mf[g])
            else: fl = [i for i in fl if i.kind == 'trans'] + [i for i in fl if i.kind != 'trans']
            out += self.sh[g] + self.fx[g] + fl
        return out

class Gen:
    def __init__(self, opt):
        self.o = opt
        self.rare_sites = []
        self.costs = {}

    def ptr_adv(self, p, tmp, amount=None):
        a = f's{sTT}' if amount is None else str(amount)
        return [I(f's_add_u32 s{p}, s{p}, {a}'), I(f's_sub_u32 s{tmp}, s{p}, s{sRING}'), I(f's_min_u32 s{p}, s{p}, s{tmp}')]
    def rp_adv(self): return self.ptr_adv(sRP, sTr)
    def wp_adv(self): return self.ptr_adv(sWP, sTw)
    def tile_src(self, ref):
        return {'Q': (sQ, sOffQ), 'K': (sK, sOffK), 'V': (sV, sOffV)}[ref[0][0]]
    def dma(self, ref, n):
        s, off = self.tile_src(ref)
        mod = self.o.get('ldmod', {}).get(ref[0][0], '')
        return I(f'buffer_load_dwordx4 v{vD[n]}, {srd(s)}, s{off} offen offset:{n*1040}{mod} lds', {'tile': ref, 'piece': n})
    def m0set(self): return I(f's_add_u32 m0, s{sWP}, s{sWL}')
    def touch(self, kind, rel=None, sreg=None):
        sr = {'Q': sQ, 'K': sK, 'V': sV}[kind]
        va = {'Q': vTQ, 'K': vTK, 'V': vTV}[kind]
        mod = self.o.get('tmod', '')
        if sreg is not None:
            return [I(f'buffer_load_dword v{vJ}, v{va}, {srd(sr)}, s{sreg} offen{mod}'), I(f's_add_u32 s{sreg}, s{sreg}, 0x4000')]
        off = {'Q': sOffQ, 'K': sOffK, 'V': sOffV}[kind]
        if rel == 0: return [I(f'buffer_load_dword v{vJ}, v{va}, {srd(sr)}, s{off} offen{mod}')]
        return [I(f's_add_u32 s{sTt}, s{off}, {rel*0x4000}'), I(f'buffer_load_dword v{vJ}, v{va}, {srd(sr)}, s{sTt} offen{mod}')]
    def tgroup(self, wave, items):
        self.tlabel = getattr(self, 'tlabel', 0) + 1
        lab = f'L_t{self.tlabel}'
        mod = self.o.get('tmod', '')
        pre = []; loads = []
        tmp = [sTt, 84, 85, 86]
        for n, (kind, sreg, add) in enumerate(items):
            sr = {'Q': sQ, 'K': sK, 'V': sV}[kind]
            va = vTQ if kind == 'Q' else vTK
            src = sreg if sreg is not None else {'Q': sOffQ, 'K': sOffK, 'V': sOffV}[kind]
            if add:
                pre.append(I(f's_add_u32 s{tmp[n]}, s{src}, {add}')); src = tmp[n]
            ld = I(f'buffer_load_dword v{vJ}, v{va}, {srd(sr)}, s{src} offen{mod}')
            ld.kind = 'salu'
            loads.append(ld)
        unit = pre + [I(f's_cmp_eq_u32 s{sW}, {wave}'), I(f's_cbranch_scc0 {lab}')] + loads + [I(f'{lab}:')]
        for ins in unit[1:]: ins.meta['glued'] = True
        post = [I(f's_add_u32 s{sreg}, s{sreg}, 0x4000') for kind, sreg, add in items if sreg is not None and not add]
        return unit + post

    def issue_tile_linear(self, ref):
        s, off = self.tile_src(ref)
        return [self.m0set()] + self.wp_adv() + [self.dma(ref, n) for n in range(4)] + [I(f's_add_u32 s{off}, s{off}, 0x4000')]
    def kread(self, f, fb, ref, last=False, addr=vK):
        a, ks = f >> 3, f & 7
        off = a * 512 + (ks >> 2) * 256 + (ks & 3) * 16
        return I(f'ds_read_b128 {vr(FB[fb],4)}, v{addr} offset:{off}', {'tile': ref, 'last': last})
    def qread(self, b, ks, addr, ref, last=False):
        off = (b & 1) * 512 + (ks >> 2) * 256 + (ks & 3) * 16
        return I(f'ds_read_b128 {Qreg(b,ks)}, v{addr} offset:{off}', {'tile': ref, 'last': last})
    def vread(self, d16, a, fb, ref, last=False):
        return I(f'ds_read_b64_tr_b16 {vr(FB[fb]+2*a,2)}, v{vV} offset:{a*512+d16*32}', {'tile': ref, 'last': last})
    def mf_qk(self, buf, f, b, fb):
        a, ks = f >> 3, f & 7
        d = vr(Sreg(buf, b) + 4 * a, 4)
        c = '0' if ks == 0 else d
        return I(f'v_mfma_f32_16x16x32_bf16 {d}, {vr(FB[fb],4)}, {Qreg(b,ks)}, {c}')
    def mf_pv(self, d16, b, fb, first):
        d = Oreg(d16, b)
        c = '0' if first else d
        return I(f'v_mfma_f32_16x16x32_bf16 {d}, {vr(FB[fb],4)}, {vr(PB+4*b,4)}, {c}')
    def stamp(self, force=False):
        if not self.o.get('stamps'): return []
        if self.o.get('tstamps') and not force: return []
        L = [I('s_mov_b32 s55, m0'), I('s_mov_b32 m0, s54'), I('s_add_u32 s54, s54, 1'), I('v_writelane_b32 v127, s52, m0'), I('s_memtime s[52:53]')] + \
            ([I('v_writelane_b32 v124, s74, m0'), I('s_memrealtime s[74:75]')] if self.o.get('stamps') == 3 else []) + [I('s_mov_b32 m0, s55'), I('s_nop 0')]
        for ins in L[1:]: ins.meta['glued'] = True
        return L

    def sched_tiles(self, G, issues, g0, stride):
        g = g0
        for ref in issues:
            s, off = self.tile_src(ref)
            gm = G.scalar(self.m0set(), g)
            g = max(g, gm)
            last = g
            for n in range(4):
                gg = G.place(self.dma(ref, n), g if n else g + 1, 2, fixed=True)
                last = gg
                g = gg + stride
            wa = self.wp_adv()
            ga = G.scalar(wa[0], gm + 1); ga = G.scalar(wa[1], ga + 1); ga = G.scalar(wa[2], ga + 1)
            gs = G.scalar(I(f's_add_u32 s{off}, s{off}, 0x4000'), last + 1)
            g = max(g - stride, last, ga, gs) + 1
        return g

    def step(self, name, cur, has_qk, next_qk, first_pv, issues, certify, pre=[], post=[], qprefetch=False, late=[], touches=[], wpskip=False, rpskip=False):
        o = self.o
        nxt = 1 - cur
        G = Gaps(128)
        Kc, Vc, Kn = ('K', 1), ('V', 0), ('K', 2)
        if has_qk:
            for g in range(64):
                if o.get('chain2'):
                    pr, r = g >> 3, g & 7
                    f, b = 2 * pr + (r & 1), r >> 1
                    G.mf[g] = self.mf_qk(nxt, f, b, f % 4)
                else:
                    G.mf[g] = self.mf_qk(nxt, g >> 2, g & 3, (g >> 2) % 4)
        dord = list(range(16))
        if first_pv and o.get('direct'): dord = list(range(8, 16)) + list(range(8))
        for g in range(64, 128):
            G.mf[g] = self.mf_pv(dord[(g >> 2) - 16], g & 3, (g >> 2) % 4, first_pv)
        ch = bool(o.get('chain2'))
        for f in range(32):
            g = 4 * f + 3
            gr = g + 3 if (ch and has_qk and f < 16 and f % 2 == 0) else g
            nf = f + 4
            if nf < 16:
                if has_qk: G.fixed(gr, self.kread(nf, nf % 4, Kc, last=(nf == 15)))
            elif nf < 32:
                G.fixed(gr, self.vread(dord[nf - 16], 0, nf % 4, Vc))
                G.fixed(gr + 1, self.vread(dord[nf - 16], 1, nf % 4, Vc, last=(nf == 31)))
            elif next_qk:
                G.fixed(g, self.kread(nf - 32, nf % 4, Kn))
            if f + 1 < 32:
                if f + 1 >= 16: G.sh[g].append(waitlds(regs('v', FB[(f + 1) % 4], 4)))
                elif has_qk:
                    if not ch: G.sh[g].append(waitlds(regs('v', FB[(f + 1) % 4], 4)))
                    elif f % 2 == 1: G.sh[g].append(waitlds(regs('v', FB[(f + 1) % 4], 4) + regs('v', FB[(f + 2) % 4], 4)))
            elif next_qk:
                G.sh[g].append(waitlds(regs('v', FB[0], 4) + (regs('v', FB[1], 4) if ch else [])))
        gb = o.get('gbar', 70) if has_qk else 2
        G.scalar(waitvm(certify), gb - 2)
        G.sh[gb].append(I('s_barrier'))
        if wpskip:
            for n in range(2):
                r = I('s_nop 0', {'reserve': ('P', n)})
                G.sh[gb - 3].append(r)
            wa = self.ptr_adv(sWP, sTw, 2 * T)
            G.sh[gb - 3] += wa
        self.sched_tiles(G, issues, gb + 1, {0: 1, 1: 5, 2: o.get('dstride', 5), 3: 3, 4: 2}[len(issues)])
        if o.get('keepwarm') and name in o['keepwarm']:
            G.place(I(f'buffer_load_dwordx4 v[124:127], v{vKW}, s[64:67], s{sKW} offen'), 20, 2, fixed=True)
        gt = o.get('gtouch', 8)
        for grp in touches:
            if o.get('touch') == 2:
                g = gt
                while G.cost[g] > 0 or G.sh[g]: g += 1
                G.fx[g] += grp; G.cost[g] += 2
                gt = g + 8
                continue
            for ins in grp:
                if ins.kind == 'vload': gt = G.place(ins, gt, 2, fixed=True) + 1
                else: gt = G.scalar(ins, gt) + 1
            gt += 6
        G.fixed(1, I(f'v_add_u32 v{vV}, s{sRP}, v{vVl}'))
        ra = self.rp_adv()
        ga = G.scalar(ra[0], 2); ga = G.scalar(ra[1], ga + 1); ga = G.scalar(ra[2], ga + 1)
        if rpskip:
            ra = self.ptr_adv(sRP, sTr, 2 * T)
            ga = G.scalar(ra[0], ga + 1); ga = G.scalar(ra[1], ga + 1); ga = G.scalar(ra[2], ga + 1)
        if next_qk:
            assert ga < 48
            G.fixed(49, I(f'v_add_u32 v{vK}, s{sRP}, v{vKl}'))
            ra = self.rp_adv()
            ga = G.scalar(ra[0], 50); ga = G.scalar(ra[1], ga + 1); ga = G.scalar(ra[2], ga + 1)
        if qprefetch:
            G.sh[gb + 1].append(I(f's_add_u32 s{sT0}, s{sRP}, s{sWT}')); G.sh[gb + 2].append(I(f's_sub_u32 s{sT1}, s{sT0}, s{sRING}'))
            G.sh[gb + 3].append(I(f's_min_u32 s{sT0}, s{sT0}, s{sT1}'))
            gq = G.place(I(f'v_add_u32 v{vT}, s{sT0}, v{vKl}'), gb + 4, fixed=True)
            ra = self.ptr_adv(sRP, sTr, 4 * T)
            ga = G.scalar(ra[0], gb + 5); ga = G.scalar(ra[1], ga + 1); ga = G.scalar(ra[2], ga + 1)
            gq += 1
            for b in range(2):
                for ks in range(8):
                    n = b * 8 + ks
                    gq = G.place(self.qread(b, ks, vT, ('Qn', n // 4), last=(n % 4 == 3)), gq, fixed=True) + 2
        ge = 0
        adds = []
        cvts = []
        for b in range(4):
            base = Sreg(cur, b)
            for i in range(8):
                r = base + i
                g = G.place(I(f'v_exp_f32 v{r}, v{r}'), ge, 2)
                ge = g + 1
                if i & 1: cvts.append((g + 1, b, I(f'v_cvt_pk_bf16_f32 v{PB + 4*b + i//2}, v{r-1}, v{r}')))
                adds.append((g + 1, I(f'v_add_f32 v{vL[b]}, v{vL[b]}, v{r}')))
        for g0, b, ins in cvts:
            gc = G.place(ins, g0)
            assert gc < 63 + b, (name, 'P late', b, gc)
        late = []
        if o.get('noadd'): adds = []
        ga = 0
        for g0, ins in adds:
            g = max(g0, ga)
            while g < 64 and G.cost[g] + 1 > (2 if G.mf[g] is not None else 4): g += 1
            if g < 64 and not late:
                G.fl[g].append(ins); G.cost[g] += 1; ga = g
            else:
                late.append((g0, ins))
        items = [(g0, ins, None) for g0, ins in late]
        if has_qk:
            xs = [(Sreg(nxt, b) + 4 * a + r, b, 31 if a == 0 else (57 + 2 * b if o.get('chain2') else 60 + b)) for a in range(2) for b in range(4) for r in range(4)]
            rs = [x[0] for x in xs]
            seq = []
            for n, (r, b, ready) in enumerate(xs):
                seq.append((ready + 5, I(f'v_fma_f32 v{r}, v{r}, s{sC}, v{vNM[b]}')))
                if o.get('nomax'): continue
                if n == 2: seq.append((0, I(f'v_max3_f32 v{vXM}, v{rs[0]}, v{rs[1]}, v{rs[2]}')))
                elif n >= 4 and n % 2 == 0: seq.append((0, I(f'v_max3_f32 v{vXM}, v{vXM}, v{rs[n-1]}, v{rs[n]}')))
            if o.get('nomax'): seq.append((0, I(f'v_mov_b32 v{vXM}, 0')))
            else: seq.append((0, I(f'v_max3_f32 v{vXM}, v{vXM}, v{rs[31]}, v{rs[31]}')))
            merged = []
            k = 0
            for n, it in enumerate(seq):
                merged.append(it)
                while k < len(late) and k * len(seq) <= n * len(late): merged.append(late[k]); k += 1
            merged += late[k:]
        else:
            merged = late
        g_lo, g_hi = o.get('gx0', 64), o.get('gx1', 122)
        free = [g for g in range(g_lo, g_hi + 1) for _ in range(max(0, 2 - G.cost[g]))]
        gprev = g_lo
        for n, (g0, ins) in enumerate(merged):
            want = free[min(len(free) - 1, n * len(free) // max(1, len(merged)))]
            gprev = G.place(ins, max(want, g0, gprev))
        if has_qk:
            G.place(I(f'v_cmp_lt_f32 vcc, s{sThr}, v{vXM}'), max(gprev + 1, 125), 1, cap=3)
        out = list(pre) + self.stamp() + G.emit()
        if has_qk:
            self.rare_sites.append((name, nxt))
            out.append(I(f's_cbranch_vccnz L_rare_{name}'))
            out.append(I(f'L_cont_{name}:'))
        out += post
        self.costs[name] = G.cost
        return out

    def setup(self):
        o = self.o
        L = []
        A = lambda s: L.append(I(s))
        A(f's_cmp_ge_u32 s2, 256')
        A(f's_cbranch_scc1 L_exit')
        A(f's_load_dwordx4 s[{sP}:{sP+3}], s[0:1], 0')
        A(f's_load_dwordx4 s[{sP+4}:{sP+7}], s[0:1], 16')
        if o.get('stamps'):
            A(f's_load_dwordx2 s[56:57], s[0:1], 40')
            A(f's_memrealtime s[58:59]')
            A(f's_memtime s[52:53]')
            A(f's_mov_b32 s54, 0')
            A(f'v_mov_b32 v127, 0')
            A(f'v_mov_b32 v124, 0')
            A(f's_memrealtime s[74:75]')
        if o.get('spin'):
            A(f's_memrealtime s[58:59]')
        t0, t1, t2, t3 = 24, 25, 26, 27
        A(f'v_lshrrev_b32 v{vT}, 6, v0')
        A(f'v_and_b32 v0, 63, v0')
        A(f'v_readfirstlane_b32 s{sW}, v{vT}')
        A(f'v_lshrrev_b32 v{t0}, 5, v0')
        A(f'v_and_b32 v{t1}, 31, v0')
        A(f'v_lshlrev_b32 v{vD[0]}, 13, v{t0}')
        A(f'v_lshl_add_u32 v{vD[0]}, v{t1}, 4, v{vD[0]}')
        A(f'v_lshl_add_u32 v{vD[0]}, v{vT}, 9, v{vD[0]}')
        for n in range(1, 4):
            A(f'v_add_u32 v{vD[n]}, {n*1008}, v{vD[0]}')
        A(f's_and_b32 s{sT0}, s2, 7')
        A(f's_lshr_b32 s{sT1}, s2, 4')
        if o.get('contig'):
            A(f's_lshl_b32 s{sT0}, s{sT0}, 4')
        else:
            A(f's_lshl_b32 s{sT1}, s{sT1}, 3')
        A(f's_add_u32 s{sT0}, s{sT0}, s{sT1}')
        A(f's_lshl_b32 s{sOffK}, s{sT0}, 18')
        A(f's_mov_b32 s{sOffV}, s{sOffK}')
        A(f's_bfe_u32 s{sT1}, s2, 0x10003')
        A(f's_lshl_b32 s{sT1}, s{sT1}, 17')
        A(f's_add_u32 s{sOffQ}, s{sOffK}, s{sT1}')
        A(f's_mul_i32 s{sWL}, s{sW}, 4160')
        A(f's_mov_b32 s{sTT}, {T}')
        A(f's_mov_b32 s{sRING}, {RING}')
        A(f's_mov_b32 s{sRP}, {4*T}')
        A(f's_mov_b32 s{sWP}, 0')
        A(f's_mov_b32 s{sItem}, 0')
        A(f's_mov_b32 s{sWb}, 0xffff')
        A(f's_lshl_b32 s{sT0}, s{sW}, 14')
        A(f's_add_u32 s{sOO[0]}, s{sOffQ}, s{sT0}')
        A(f's_add_u32 s{sOO[1]}, s{sOO[0]}, 0x2000')
        A(f's_add_u32 s{sOO[2]}, s{sOO[0]}, 0x10000')
        A(f's_add_u32 s{sOO[3]}, s{sOO[0]}, 0x12000')
        A(f's_mul_i32 s{sWT}, s{sW}, {T}')
        A(f's_waitcnt lgkmcnt(0)')
        for i, b in enumerate((sQ, sK, sV, sO)):
            A(f's_mov_b32 s{b}, s{sP+2*i}')
            A(f's_and_b32 s{b+1}, s{sP+2*i+1}, 0xffff')
            A(f's_mov_b32 s{b+2}, {0 if (b == sO and o.get("nostore")) else TENSOR_BYTES}')
            A(f's_mov_b32 s{b+3}, 0x20000')
        if o.get('stagger'):
            A('s_bitcmp1_b32 s2, 4')
            A('s_cbranch_scc0 L_nocode')
            for rep in range(o['stagger']):
                self.pf_done = False
                L += self.code_prefetch(rep)
                A('s_waitcnt vmcnt(0)')
            A('L_nocode:')
        if o.get('touch'):
            if o['touch'] == 2:
                A(f'v_lshlrev_b32 v{vTQ}, 7, v0')
                A(f's_bfe_u32 s{sTt}, s2, 0x10003')
                A(f's_lshl_b32 s{sTt}, s{sTt}, 13')
                A(f'v_add_u32 v{vTK}, s{sTt}, v{vTQ}')
                A(f's_add_u32 s{sTK}, s{sOffK}, {6*0x4000}')
                A(f's_add_u32 s{sTV}, s{sOffV}, {5*0x4000}')
        if o.get('touch') == 1:
            A(f'v_lshlrev_b32 v{vTK}, 7, v0')
            A(f's_bfe_u32 s{sTt}, s2, 0x10003')
            A(f's_lshl_b32 s{sTt}, s{sTt}, 13')
            A(f'v_add_u32 v{vTK}, s{sTt}, v{vTK}')
            A(f'v_mov_b32 v{vTV}, v{vTK}')
            A(f'v_lshlrev_b32 v{vTQ}, 7, v0')
            A(f's_and_b32 s{sTt}, s{sW}, 1')
            A(f's_lshl_b32 s{sTt}, s{sTt}, 13')
            A(f'v_add_u32 v{vTQ}, s{sTt}, v{vTQ}')
            for reg, cmp_ in ((vTK, f's_cmp_eq_u32 s{sW}, 0'), (vTV, f's_cmp_eq_u32 s{sW}, 1'), (vTQ, f's_cmp_ge_u32 s{sW}, 2')):
                A(cmp_)
                A(f's_cselect_b32 s{sTt}, 0, 0x40000000')
                A(f'v_add_u32 v{reg}, s{sTt}, v{reg}')
            A(f's_add_u32 s{sTK}, s{sOffK}, {6*0x4000}')
            A(f's_add_u32 s{sTV}, s{sOffV}, {5*0x4000}')
            if o.get('headtouch', 1):
                if o.get('throttle'):
                    A('s_bitcmp1_b32 s2, 4')
                    A('s_cbranch_scc1 L_notouch')
                for n in range(8): L += self.touch('Q', n)
                for kind, n in [('K', 0), ('K', 1), ('V', 0), ('K', 2), ('V', 1)]: L += self.touch(kind, n)
                if o.get('throttle'): A('L_notouch:')
        for k, ref in enumerate([('Q', 0), ('Q', 1), ('Q', 2), ('Q', 3), ('K', 0)] + [('Q', n) for n in range(4, o.get('headq', 5))]):
            L += self.issue_tile_linear(ref)
            if k < o.get('throttle', 0):
                if o.get('tgroups'):
                    if k == 0:
                        A('s_bfe_u32 s88, s2, 0x20004')
                        A(f's_mul_i32 s88, s88, {o["tgroups"]}')
                    A(f's_cmp_gt_u32 s88, {k}')
                else:
                    A(f's_bitcmp1_b32 s2, {o.get("tbit", 4)}')
                A(f's_cbranch_scc0 L_deep{k}')
                A('s_waitcnt vmcnt(0)')
                L[-1].kind = 'salu'
                A(f'L_deep{k}:')
        A(f'v_and_b32 v{t0}, 15, v0')
        A(f'v_lshrrev_b32 v{t1}, 4, v0')
        A(f'v_lshrrev_b32 v{t2}, 2, v{t0}')
        A(f'v_and_b32 v{t3}, 1, v{t2}')
        A(f'v_lshrrev_b32 v{t2}, 1, v{t2}')
        A(f'v_lshl_add_u32 v{t2}, v{t3}, 1, v{t2}')
        A(f'v_mov_b32 v{vT+1}, v{t2}')
        A(f'v_and_b32 v{t3}, 3, v{t0}')
        A(f'v_lshl_add_u32 v{t2}, v{t3}, 2, v{t2}')
        A(f'v_mul_u32_u24 v{vKl}, 1040, v{t2}')
        A(f'v_lshl_add_u32 v{vKl}, v{t1}, 6, v{vKl}')
        A(f'v_and_b32 v{t3}, 1, v{t1}')
        A(f'v_lshrrev_b32 v{t2}, 1, v{t1}')
        A(f'v_lshl_add_u32 v{t2}, v{t3}, 1, v{t2}')
        A(f'v_bfe_u32 v{t3}, v0, 2, 2')
        A(f'v_lshl_add_u32 v{t2}, v{t3}, 2, v{t2}')
        A(f'v_mul_u32_u24 v{vVl}, 1040, v{t2}')
        A(f'v_and_b32 v{t3}, 3, v0')
        A(f'v_lshl_add_u32 v{vVl}, v{t3}, 3, v{vVl}')
        A(f'v_and_b32 v{t3}, 3, v{t0}')
        A(f'v_lshl_add_u32 v{t2}, v{vT+1}, 2, v{t3}')
        A(f'v_lshrrev_b32 v{vT+1}, 3, v{t2}')
        A(f'v_lshl_add_u32 v{t3}, v{vT+1}, 2, v{t3}')
        A(f'v_and_b32 v{vT+1}, 1, v{t1}')
        A(f'v_lshrrev_b32 v{vT+2}, 1, v{t1}')
        A(f'v_lshl_add_u32 v{vT+1}, v{vT+1}, 1, v{vT+2}')
        A(f'v_xor_b32 v{t3}, v{t3}, v{vT+1}')
        A(f'v_lshlrev_b32 v{t3}, 4, v{t3}')
        A(f'v_lshl_add_u32 v{t3}, v{t2}, 7, v{t3}')
        A(f'v_lshl_add_u32 v{t3}, v{vT}, 11, v{t3}')
        A(f'v_add_u32 v{vSW[0]}, {STG}, v{t3}')
        A(f'v_xor_b32 v{vSW[1]}, 64, v{vSW[0]}')
        A(f'v_lshrrev_b32 v{t2}, 3, v0')
        A(f'v_and_b32 v{t3}, 7, v0')
        A(f'v_and_b32 v{vT+1}, 3, v{t2}')
        A(f'v_xor_b32 v{vSR[0]}, v{vT+1}, v{t3}')
        A(f'v_lshlrev_b32 v{vSR[0]}, 4, v{vSR[0]}')
        A(f'v_lshl_add_u32 v{vSR[0]}, v{t2}, 7, v{vSR[0]}')
        A(f'v_lshl_add_u32 v{vSR[0]}, v{vT}, 11, v{vSR[0]}')
        A(f'v_add_u32 v{vSR[0]}, {STG}, v{vSR[0]}')
        A(f'v_xor_b32 v{vSR[1]}, 64, v{vSR[0]}')
        A(f'v_add_u32 v{vSR[1]}, 0x400, v{vSR[1]}')
        A(f'v_lshlrev_b32 v{vO[0]}, 9, v{t2}')
        A(f'v_lshl_add_u32 v{vO[0]}, v{t3}, 4, v{vO[0]}')
        A(f'v_add_u32 v{vO[1]}, 0x1000, v{vO[0]}')
        if o.get('direct'):
            A(f'v_lshrrev_b32 v{t2}, 2, v{t0}')
            A(f'v_and_b32 v{t3}, 1, v{t2}')
            A(f'v_lshrrev_b32 v{t2}, 1, v{t2}')
            A(f'v_lshl_add_u32 v{t2}, v{t3}, 1, v{t2}')
            A(f'v_and_b32 v{t3}, 3, v{t0}')
            A(f'v_lshl_add_u32 v{t2}, v{t2}, 2, v{t3}')
            A(f'v_lshlrev_b32 v{vO[0]}, 9, v{t2}')
            A(f'v_and_b32 v{t3}, 1, v{t1}')
            A(f'v_lshrrev_b32 v{t2}, 1, v{t1}')
            A(f'v_lshl_add_u32 v{t2}, v{t3}, 1, v{t2}')
            A(f'v_lshl_add_u32 v{vO[0]}, v{t2}, 4, v{vO[0]}')
        A(f's_mov_b32 s{sC}, 0x3db8aa3b')
        A(f's_mov_b32 s{sThr}, 0x41000000')
        L += self.code_prefetch()
        if o.get('keepwarm'):
            A(f's_lshr_b32 s{sKW}, s2, 3')
            A(f's_lshl_b32 s{sKW}, s{sKW}, 2')
            A(f's_add_u32 s{sKW}, s{sKW}, s{sW}')
            A(f's_and_b32 s{sKW}, s{sKW}, 63')
            A(f's_lshl_b32 s{sKW}, s{sKW}, 10')
            A(f'v_lshlrev_b32 v{vKW}, 4, v0')
        if o.get('tlbwarm'):
            A(f'v_lshlrev_b32 v{vJ}, 2, v0')
            A(f's_add_u32 s84, s{sOffK}, {ITEM_STRIDE}')
            A(f's_add_u32 s85, s{sOO[0]}, {ITEM_STRIDE}')
            junk = SB[1] + 28
            for n, (sr, so) in enumerate([(sQ, 85), (sK, 84), (sV, 84), (sO, sOO[0]), (sO, 85)]):
                A(f'buffer_load_dword v{junk + (n % 4)}, v{vJ}, {srd(sr)}, s{so} offen')
        if o.get('warm'):
            for i in range(16):
                A(f'v_mul_u32_u24 v{PB+i}, {0x3d81 + 37*i}, v0')
                A(f'v_lshl_or_b32 v{PB+i}, v{PB+i}, 16, v{PB+i}')
                A(f'v_and_b32 v{PB+i}, 0xbfffbfff, v{PB+i}')
                A(f'v_or_b32 v{PB+i}, 0x3c003c00, v{PB+i}')
            A(f's_mov_b32 s{sCnt}, {o["warm"]}')
            A('L_warm:')
            for i in range(16):
                A(f'v_mfma_f32_16x16x32_bf16 {vr(OLO+4*i,4)}, {vr(PB+4*(i%4),4)}, {vr(PB+4*((i+1+i//4)%4),4)}, 0')
            A(f's_sub_u32 s{sCnt}, s{sCnt}, 1')
            A(f's_cmp_lg_u32 s{sCnt}, 0')
            A('s_cbranch_scc1 L_warm')
        return L

    def code_prefetch(self, rep=0):
        o = self.o
        npf = o.get('codepf', 0)
        L = []
        A = lambda s: L.append(I(s))
        if not npf or getattr(self, 'pf_done', False): return L
        self.pf_done = True
        t2 = 30
        if rep == 0:
            A('s_getpc_b64 s[64:65]')
            A('L_pc:')
            A('s_and_b32 s65, s65, 0xffff')
            A('s_mov_b32 s66, L_code_end-L_pc')
            A('s_mov_b32 s67, 0x20000')
            if o.get('stagger'):
                A('s_lshr_b32 s68, s2, 5')
                A('s_and_b32 s68, s68, 7')
                A('s_lshl_b32 s68, s68, 3')
                A('s_bfe_u32 s69, s2, 0x10003')
                A('s_lshl_b32 s69, s69, 2')
                A('s_add_u32 s68, s68, s69')
            else:
                A('s_lshr_b32 s68, s2, 3')
                A('s_and_b32 s68, s68, 7')
                A('s_lshl_b32 s68, s68, 2')
            A(f's_add_u32 s68, s68, s{sW}')
            A(f's_mul_i32 s68, s68, {npf*1024*max(1, o.get("stagger", 0))}')
            A(f'v_lshlrev_b32 v{t2}, 4, v0')
        else:
            A(f's_add_u32 s68, s68, {npf*1024}')
        for i in range(npf):
            A(f'buffer_load_dwordx4 {vr(SB[1] + 4 * (i % 8), 4)}, v{t2}, s[64:67], s68 offen offset:{i*1024}')
        return L

    def qk0_full(self):
        G = Gaps(64)
        K0 = ('K0', 0)
        rd = [self.kread(f, f % 4, K0, last=(f == 15)) for f in range(16)]
        q = []
        for ks in range(8):
            for b in (2, 3):
                n = ks * 2 + (b & 1)
                q.append(self.qread(b, ks, vT, ('Q', 4 + n // 4), last=(n % 4 == 3)))
        pre = q[:8] + rd[:4]
        for g in range(64):
            G.mf[g] = self.mf_qk(0, g >> 2, g & 3, (g >> 2) % 4)
            if self.o.get('noqk0') and (g & 3) < 2: G.mf[g] = None
        for f in range(16):
            g = 4 * f + 3
            if f + 4 < 16: G.fixed(g, rd[f + 4])
            if f + 4 < 8:
                G.fixed(g - 2, q[2 * (f + 4)]); G.fixed(g - 1, q[2 * (f + 4) + 1])
            if f + 1 < 16:
                w = regs('v', FB[(f + 1) % 4], 4)
                if f + 1 < 8:
                    for b in (2, 3): w += regs('a', (b * 8 + f + 1) * 4, 4)
                G.sh[g].append(waitlds(w))
        w0 = regs('v', FB[0], 4)
        for b in (2, 3): w0 += regs('a', (b * 8) * 4, 4)
        pre.append(waitlds(w0))
        return pre + G.emit()

    def tile_events(self, ref):
        s, off = self.tile_src(ref)
        d = [self.dma(ref, n) for n in range(4)]
        return [[self.m0set()] + self.wp_adv() + [d[0]], [d[1]], [d[2]], [d[3], I(f's_add_u32 s{off}, s{off}, 0x4000')]]

    @staticmethod
    def times(stream):
        t = 0; last = -100; out = []
        prev_mfma = False
        for ins in stream:
            k = ins.kind
            if k == 'mfma':
                t = max(t, last + 16); last = t
                out.append(t); t += 8; prev_mfma = True
                continue
            out.append(t)
            if k in ('label', 'pseudo', 'dir'): continue
            if k == 'nop': t += 4 * ins.n
            elif k == 'trans' or ins.op.startswith('v_pk_') : t += 8
            elif k in ('salu', 'wait', 'barrier', 'branch', 'smem'): t += 0 if prev_mfma else 4
            elif k == 'dsw': t += 8
            else: t += 4
            prev_mfma = False
        return out

    def inject(self, stream, events):
        tm = self.times(stream)
        pos = []
        lo = 0
        for e_lo, e_hi, hint, ins in events:
            p = max(lo, e_lo)
            if hint is not None:
                while p < len(stream) and tm[p] < hint: p += 1
            while p < len(stream) and p > 0 and stream[p - 1].kind == 'mfma' and stream[p].kind in ('salu', 'wait', 'barrier', 'pseudo'): p += 1
            while p < len(stream) and p > 0 and (('m0', 0) in stream[p - 1].wr or stream[p].meta.get('glued')): p += 1
            if e_hi is not None: p = min(p, e_hi)
            while p > 0 and p < len(stream) and stream[p].meta.get('glued'): p -= 1
            pos.append(p); lo = max(lo, p)
        for k in range(len(pos) - 2, -1, -1): pos[k] = min(pos[k], pos[k + 1])
        for k, ev in enumerate(events): assert pos[k] >= ev[0], ('event cannot be placed', k, pos[k], ev[0], [i.text for i in ev[3]])
        out = []
        k = 0
        for i in range(len(stream) + 1):
            while k < len(events) and pos[k] == i:
                out += events[k][3]; k += 1
            if i < len(stream): out.append(stream[i])
        assert k == len(events)
        return out

    def qk0_half(self, h, pre_reads_q):
        G = Gaps(32)
        K0 = ('K0', 0)
        pre = []
        rd = [self.kread(f, f % 4, K0, last=(h == 1 and f == 15)) for f in range(16)]
        if pre_reads_q:
            q = []
            for ks in range(8):
                for b in (2 * h, 2 * h + 1):
                    n = ks * 2 + (b & 1)
                    q.append(self.qread(b, ks, vT, ('Q', 4 * h + n // 4), last=(n % 4 == 3)))
            pre += q[:8]
        pre += rd[:4]
        for g in range(32):
            f, b = g >> 1, 2 * h + (g & 1)
            G.mf[g] = self.mf_qk(0, f, b, f % 4)
        for f in range(16):
            g = 2 * f + 1
            if f + 4 < 16: G.fixed(g, rd[f + 4])
            if pre_reads_q and f + 4 < 8:
                G.fixed(g - 1, q[2 * (f + 4)]); G.fixed(g, q[2 * (f + 4) + 1])
            if f + 1 < 16:
                w = regs('v', FB[(f + 1) % 4], 4)
                if pre_reads_q and f + 1 < 8:
                    for b in (2 * h, 2 * h + 1): w += regs('a', (b * 8 + f + 1) * 4, 4)
                G.sh[g].append(waitlds(w))
        w0 = regs('v', FB[0], 4)
        if pre_reads_q:
            for b in (2 * h, 2 * h + 1): w0 += regs('a', (b * 8) * 4, 4)
        pre.append(waitlds(w0))
        return pre + G.emit()

    def init_softmax(self):
        L = []
        A = lambda s, m=None: L.append(I(s, m))
        tt = SB[1]
        for b in range(4):
            s = Sreg(0, b); t = tt + 2 * b
            A(f'v_max3_f32 v{t}, v{s}, v{s+1}, v{s+2}')
            A(f'v_max3_f32 v{t}, v{t}, v{s+3}, v{s+4}')
            A(f'v_max3_f32 v{t}, v{t}, v{s+5}, v{s+6}')
            A(f'v_max_f32 v{t}, v{t}, v{s+7}')
            A(f'v_mov_b32 v{t+1}, v{t}')
        L += self.xlane('v_max_f32', [tt + 2 * b for b in range(4)])
        for b in range(4):
            t = tt + 2 * b
            A(f'v_mul_f32 v{vNM[b]}, s{sC}, v{t}')
            A(f'v_sub_f32 v{vNM[b]}, 0, v{vNM[b]}')
            A(f'v_mov_b32 v{vL[b]}, 0')
        for b in range(4):
            for i in range(8):
                r = Sreg(0, b) + i
                A(f'v_fma_f32 v{r}, v{r}, s{sC}, v{vNM[b]}')
        return L

    def xlane(self, op, ts):
        L = []
        A = lambda s: L.append(I(s))
        A('s_nop 1')
        for t in ts: A(f'v_permlane16_swap_b32 v{t}, v{t+1}')
        for t in ts: A(f'{op} v{t}, v{t}, v{t+1}')
        for t in ts: A(f'v_mov_b32 v{t+1}, v{t}')
        A('s_nop 1')
        for t in ts: A(f'v_permlane32_swap_b32 v{t}, v{t+1}')
        for t in ts: A(f'{op} v{t}, v{t}, v{t+1}')
        return L

    def convert_direct(self, mod=''):
        L = []
        A = lambda s, m=None: L.append(I(s, m))
        iv = SB[1]
        for b in range(4):
            A(f'v_mov_b32 v{iv+2*b}, v{vL[b]}')
            A(f'v_mov_b32 v{iv+2*b+1}, v{vL[b]}')
        L += self.xlane('v_add_f32', [iv + 2 * b for b in range(4)])
        for b in range(4): A(f'v_rcp_f32 v{iv+2*b}, v{iv+2*b}')
        A('s_nop 1')
        tA = SB[1] + 8
        stores = []; marks = []
        for ci, (b, dq) in enumerate([(b, dq) for dq in (0, 2, 1, 3) for b in range(4)]):
            srcs = []
            for d in range(4):
                f, r = Obase(4 * dq + d, b)
                if f == 'a':
                    for i in range(4): A(f'v_accvgpr_read_b32 v{tA+4*d+i}, a{r+i}')
                    r = tA + 4 * d
                srcs.append(r)
            for d in range(4):
                r = srcs[d]
                A(f'v_pk_mul_f32 {vr(r,2)}, {vr(r,2)}, {vr(iv+2*b,2)} op_sel_hi:[1,0]')
                A(f'v_pk_mul_f32 {vr(r+2,2)}, {vr(r+2,2)}, {vr(iv+2*b,2)} op_sel_hi:[1,0]')
            dst = []
            for m in range(2):
                d16 = 4 * (dq & 1) + 2 * m + (dq >> 1)
                dst.append((d16, Obase(d16, b)[1]))
            for m in range(2):
                p = dst[m][1]
                ra, rb = srcs[2 * m], srcs[2 * m + 1]
                A(f'v_cvt_pk_bf16_f32 v{p}, v{ra}, v{ra+1}')
                A(f'v_cvt_pk_bf16_f32 v{p+1}, v{ra+2}, v{ra+3}')
                A(f'v_cvt_pk_bf16_f32 v{p+2}, v{rb}, v{rb+1}')
                A(f'v_cvt_pk_bf16_f32 v{p+3}, v{rb+2}, v{rb+3}')
            p0, p1 = dst[0][1], dst[1][1]
            A(f'v_permlane16_swap_b32 v{p0}, v{p0+2}')
            A(f'v_permlane16_swap_b32 v{p0+1}, v{p0+3}')
            A('s_nop 0')
            A(f'v_permlane16_swap_b32 v{p1}, v{p1+2}')
            A(f'v_permlane16_swap_b32 v{p1+1}, v{p1+3}')
            marks.append(len(L))
            for m in range(2):
                d16, p = dst[m]
                stores.append((ci, 96 + 4 * d16 + b,
                               [I(f'buffer_store_dwordx4 {vr(p,4)}, v{vO[0]}, {srd(sO)}, s{sOO[b]} offen offset:{dq*128+m*64}{mod}')]))
        return L, marks, stores

    def convert(self, mod='', npark=0):
        if self.o.get('direct'): return self.convert_direct(mod)
        L = []
        A = lambda s, m=None: L.append(I(s, m))
        iv = SB[1]
        for b in range(4):
            A(f'v_mov_b32 v{iv+2*b}, v{vL[b]}')
            A(f'v_mov_b32 v{iv+2*b+1}, v{vL[b]}')
        L += self.xlane('v_add_f32', [iv + 2 * b for b in range(4)])
        for b in range(4): A(f'v_rcp_f32 v{iv+2*b}, v{iv+2*b}')
        A('s_nop 1')
        tA = SB[1] + 8
        pk = [SB[1] + 24, FB[0], FB[2]]
        chunks = [(b, dq) for dq in (2, 3, 0, 1) for b in range(4)]
        stores = []
        marks = []
        self.cv_split = None
        self.parked = []
        pend = []
        for ci, (b, dq) in enumerate(chunks):
            parked = ci >= 16 - npark
            if ci == 16 - npark:
                L += pend; pend = []
                marks.append(len(L))
                self.cv_split = len(L)
            p = pk[ci % 3]
            V = []
            srcs = []
            for d in range(4):
                f, r = Obase(4 * dq + d, b)
                if f == 'a':
                    for i in range(4): V.append(I(f'v_accvgpr_read_b32 v{tA+4*d+i}, a{r+i}'))
                    r = tA + 4 * d
                srcs.append(r)
            for d in range(4):
                r = srcs[d]
                V.append(I(f'v_pk_mul_f32 {vr(r,2)}, {vr(r,2)}, {vr(iv+2*b,2)} op_sel_hi:[1,0]'))
                V.append(I(f'v_pk_mul_f32 {vr(r+2,2)}, {vr(r+2,2)}, {vr(iv+2*b,2)} op_sel_hi:[1,0]'))
            for d in range(4):
                r = srcs[d]
                V.append(I(f'v_cvt_pk_bf16_f32 v{p+2*d}, v{r}, v{r+1}'))
                V.append(I(f'v_cvt_pk_bf16_f32 v{p+2*d+1}, v{r+2}, v{r+3}'))
            n = len(V)
            for k, op in enumerate(pend):
                V.insert(min(len(V), (k + 1) * n // (len(pend) + 1) + k), op)
            L += V
            if pend and not parked: marks.append(len(L))
            sw = [I(f'v_permlane16_swap_b32 v{p+4*m+i}, v{p+4*m+2+i}') for m in range(2) for i in range(2)]
            L += sw
            if parked:
                cp = ci - (16 - npark)
                pend = [I(f'ds_write_b128 v{vPK[m]}, {vr(p+4*m,4)} offset:{cp*2048}') for m in range(2)]
                for k in range(2):
                    self.parked.append((cp, k, b, dq))
                continue
            pend = [I(f'ds_write_b128 v{vSW[m]}, {vr(p+4*m,4)}') for m in range(2)]
            if npark and self.o.get('stgpark') and ci == 15 - npark:
                self.stg_parked = [(k, b, dq) for k in range(2)]
                continue
            for k in range(2):
                kk = 2 * (ci // 4) + k
                ra = 128 + (kk * 4 + b) * 4
                pend.append(I(f'ds_read_b128 {ar(ra,4)}, v{vSR[k]}'))
                stores.append((ci, 96 + 4 * kk + b, [waitlds(regs('a', ra, 4)),
                               I(f'buffer_store_dwordx4 {ar(ra,4)}, v{vO[k]}, {srd(sO)}, s{sOO[b]} offen offset:{dq*128}{mod}')]))
        L += pend
        marks.append(len(L))
        return L, marks, stores

    def rare(self, buf):
        L = []
        A = lambda s, m=None: L.append(I(s, m))
        A(f'L_rarefn_{buf}:')
        A('s_nop 15')
        tt = PB
        for b in range(4):
            s = Sreg(buf, b); t = tt + 2 * b
            A(f'v_max3_f32 v{t}, v{s}, v{s+1}, v{s+2}')
            A(f'v_max3_f32 v{t}, v{t}, v{s+3}, v{s+4}')
            A(f'v_max3_f32 v{t}, v{t}, v{s+5}, v{s+6}')
            A(f'v_max_f32 v{t}, v{t}, v{s+7}')
            A(f'v_mov_b32 v{t+1}, v{t}')
        L += self.xlane('v_max_f32', [tt + 2 * b for b in range(4)])
        for b in range(4):
            t = tt + 2 * b
            A(f'v_max_f32 v{t}, 0, v{t}')
            A(f'v_sub_f32 v{vNM[b]}, v{vNM[b]}, v{t}')
            A(f'v_sub_f32 v{t+1}, 0, v{t}')
            A(f'v_exp_f32 v{t+1}, v{t+1}')
            for i in range(8):
                A(f'v_sub_f32 v{Sreg(buf,b)+i}, v{Sreg(buf,b)+i}, v{t}')
            A(f'v_mul_f32 v{vL[b]}, v{vL[b]}, v{t+1}')
        A(f's_branch L_rescale')
        return L

    def rescale(self):
        L = []
        A = lambda s, m=None: L.append(I(s, m))
        A('L_rescale:')
        tt = PB
        for d16 in range(16):
            for b in range(4):
                f, r = Obase(d16, b)
                fac = tt + 2 * b + 1
                if f == 'v':
                    for i in range(4): A(f'v_mul_f32 v{r+i}, v{r+i}, v{fac}')
                else:
                    for i in range(4): A(f'v_accvgpr_read_b32 v{tt+8+i}, a{r+i}')
                    for i in range(4): A(f'v_mul_f32 v{tt+8+i}, v{tt+8+i}, v{fac}')
                    for i in range(4): A(f'v_accvgpr_write_b32 a{r+i}, v{tt+8+i}')
        A('s_nop 1')
        A(f's_setpc_b64 s[{sRet}:{sRet+1}]')
        return L

    def second_half(self, full=False):
        L = []
        A = lambda s, m=None: L.append(I(s, m))
        L += self.stamp()
        L.append(waitvm([('Q', 4), ('Q', 5), ('Q', 6), ('Q', 7)]))
        A('s_barrier')
        A(f's_add_u32 s{sT0}, s{sRP}, s{sWT}')
        A(f's_add_u32 s{sT0}, s{sT0}, s{sTT}')
        A(f's_sub_u32 s{sT1}, s{sT0}, s{sRING}')
        A(f's_min_u32 s{sT0}, s{sT0}, s{sT1}')
        A(f'v_add_u32 v{vT}, s{sT0}, v{vKl}')
        if full: A(f'v_add_u32 v{vK}, s{sRP}, v{vKl}')
        L += self.ptr_adv(sRP, sTr, 5 * T)
        L += self.qk0_full() if full else self.qk0_half(1, True)
        L += self.stamp()
        L.append(waitlds(sum((regs('v', FB[i], 4) for i in range(4)), []) + regs('a', 64, 64)))
        L.append(waitvm([('K', 1), ('V', 0)]))
        A('s_barrier')
        e2 = len(L)
        A(f'v_add_u32 v{vK}, s{sRP}, v{vKl}')
        L += self.rp_adv()
        L += [self.kread(f, f % 4, ('K', 1)) for f in range(4)]
        L += self.init_softmax()
        L.append(waitlds(regs('v', FB[0], 4) + (regs('v', FB[1], 4) if self.o.get('chain2') else [])))
        return L, e2

    def first_half(self):
        L = []
        A = lambda s, m=None: L.append(I(s, m))
        A(f'v_add_u32 v{vK}, s{sRP}, v{vKl}')
        L += self.qk0_half(0, False)
        return L

    @staticmethod
    def mfma_index(stream, start, n):
        c = -1
        for i in range(start, len(stream)):
            if stream[i].kind == 'mfma':
                c += 1
                if c == n: return i
        raise ValueError

    def item2_blocks(self, B, cert):
        o = self.o
        B['s1c'] = self.step('s1c', 1, True, True, False, [('K', 4), ('V', 3), ('K', 5)], cert, pre=[I('L_s1c:')])
        B['s2c'] = self.step('s2c', 0, True, True, False, [('V', 3), ('K', 5), ('V', 4)], cert, post=[I(f's_mov_b32 s{sCnt}, 4')])
        B['s3c'] = self.step('s3c', 1, True, True, False, [('K', 5), ('V', 4)], cert, pre=[I('L_loop2:')])
        B['s4c'] = self.step('s4c', 0, True, True, False, [('K', 5), ('V', 4)], cert,
                             post=[I(f's_sub_u32 s{sCnt}, s{sCnt}, 1'), I(f's_cmp_lg_u32 s{sCnt}, 0'), I('s_cbranch_scc1 L_loop2')] +
                                  ([I(f's_cmp_eq_u32 s{sItem}, 0'), I('s_cbranch_scc1 L_s11')] if o.get('d3both') else []))
        B['s11c'] = self.step('s11c', 1, True, True, False, [('V', 4)], cert)
        B['s12c'] = self.step('s12c', 0, True, True, False, [], cert)
        B['s13c'] = self.step('s13c', 1, True, True, False, [], cert)
        B['s14c'] = self.step('s14c', 0, True, False, False, [], [('V', 1)])
        B['s15c'] = self.step('s15c', 1, False, False, False, [], [])

    def paced(self, tm, items, t0):
        o = self.o
        maxfl = o.get('maxfl', 12)
        lat = {'d': o.get('latd', 2200), 's': o.get('lats', 800)}
        gap = {'d': o.get('vgap', 70), 's': o.get('sgap', 145)}
        ev = []; hist = []; t = t0
        for kind, ins, lo, hi in items:
            t = max(t, tm[min(lo, len(tm) - 1)])
            if len(hist) >= maxfl: t = max(t, sorted(hist)[-maxfl])
            ev.append((lo, hi, t, ins))
            hist.append(t + lat[kind])
            t += gap[kind]
        return ev

    def build(self):
        o = self.o
        B = {}
        B['setup'] = self.setup()
        cert = [('K', 2), ('V', 1)]
        iss = [('K', 4), ('V', 3)]
        gbar = o.get('gbar', 70)
        H = self.stamp()
        H.append(waitvm([('Q', 0), ('Q', 1), ('Q', 2), ('Q', 3)]))
        H.append(I('s_barrier'))
        H += self.stamp()
        hq = len(H)
        H.append(I(f'v_add_u32 v{vT}, s{sWT}, v{vKl}'))
        for b in range(2):
            for ks in range(8):
                n = b * 8 + ks
                H.append(self.qread(b, ks, vT, ('Q', n // 4), last=(n % 4 == 3)))
        H.append(waitvm([('K0', 0)]))
        H.append(I('s_waitcnt lgkmcnt(0)'))
        H.append(I('s_barrier'))
        if o.get('touch') == 1:
            for kind, rel in [('K', 2), ('V', 2), ('K', 3), ('V', 3), ('K', 4), ('V', 4)]: H += self.touch(kind, rel)
        h0 = len(H)
        H += self.first_half()
        h1 = len(H)
        sec, e2 = self.second_half()
        w = [h1 + i for i, ins in enumerate(sec) if ins.op == 'PSEUDO_WAITVM']
        e1b = h1 + next(i for i, ins in enumerate(sec) if ins.kind == 'barrier') + 1
        e2 += len(H)
        H += sec
        s0 = len(H)
        self.tw = 0
        def tkv():
            if not o.get('touch'): return []
            if o['touch'] == 2:
                self.tw = (self.tw + 1) % 4
                return [self.tgroup(self.tw, [('K', sTK, 0), ('V', sTV, 0)])]
            return [self.touch('K', sreg=sTK), self.touch('V', sreg=sTV)]
        def tq(rels):
            if not o.get('touch'): return []
            if o['touch'] == 2:
                return [self.tgroup(2 + (n & 1), [('Q', None, r * 0x4000), ('Q', None, r * 0x4000 + 0x2000)]) for n, r in enumerate(rels)]
            return [self.touch('Q', r) for r in rels]
        H += self.step('s0a', 0, True, True, True, iss, cert,
                       post=([I('s_branch L_s1c')] if o.get('d3both') else [I(f's_mov_b32 s{sCnt}, 5')]), touches=tkv())
        gb0 = self.mfma_index(H, s0, gbar - 4)
        items = []
        nq = o.get('headq', 5)
        for n in range(nq, 8): items += [('d', e, hq, w[0]) for e in self.tile_events(('Q', n))]
        for ref in [('K', 1), ('V', 0)]: items += [('d', e, h0, w[1]) for e in self.tile_events(ref)]
        for ref in [('K', 2), ('V', 1)]: items += [('d', e, e1b, gb0) for e in self.tile_events(ref)]
        for ref in [('K', 3), ('V', 2)]: items += [('d', e, e2, gb0) for e in self.tile_events(ref)]
        tm = self.times(H)
        ev = []
        t = tm[hq]
        hg = o.get('headgap', [40, 60, 70, 130])
        for n, (kind, ins, lo, hi) in enumerate(items):
            grp = 0 if hi == w[0] else (1 if hi == w[1] else (2 if lo == e1b else 3))
            t = max(t, tm[lo]); ev.append((lo, hi, t, ins)); t += hg[grp]
        pf = self.code_prefetch()
        B['head'] = self.inject(H, ev)
        JUMP = ITEM_STRIDE - 16 * 16384
        jk = [I(f's_cmp_eq_u32 s{sCnt}, 1'), I(f's_cselect_b32 s{sTt}, {JUMP}, 0'), I(f's_add_u32 s{sTK}, s{sTK}, s{sTt}')] if o.get('touch') else []
        wb = []
        if o.get('wbl2'):
            wb = [I(f's_cmp_eq_u32 s{sCnt}, s{sWb}'), I('s_cbranch_scc0 L_nowb'), I('buffer_wbl2 sc1'), I('L_nowb:')]
        B['s1'] = self.step('s1', 1, True, True, False, iss, cert, pre=[I('L_loop:')], touches=tkv(), post=wb)
        B['s2'] = self.step('s2', 0, True, True, False, iss, cert, touches=tkv(), pre=jk,
                            post=[I(f's_sub_u32 s{sCnt}, s{sCnt}, 1'), I(f's_cmp_lg_u32 s{sCnt}, 0'), I('s_cbranch_scc1 L_loop')])
        sep2 = bool(o.get('sep2'))
        def nxt(off, srd_, tiles):
            if sep2: return [I(f's_add_u32 s{off}, s{off}, {ITEM_STRIDE - tiles*16384}')]
            return [I(f's_add_u32 s{off}, s{off}, {ITEM_STRIDE - tiles*16384}'),
                    I(f's_cmp_eq_u32 s{sItem}, 1'),
                    I(f's_cselect_b32 s{srd_+2}, 0, s{srd_+2}'),
                    I(f's_cselect_b32 s{off}, 0, s{off}')]
        B['s11'] = self.step('s11', 1, True, True, False, [('Qn', 0), ('Qn', 1)] if o.get('d3both') else ([('K', 4), ('V', 3), ('Qn', 0)] if o.get('bal33') else [('K', 4), ('V', 3), ('Qn', 0), ('Qn', 1)]), cert,
                             pre=([I('L_s11:')] if o.get('d3both') else []) + nxt(sOffQ, sQ, 8) + ([I(f's_add_u32 s{sTV}, s{sTV}, {JUMP}')] if o.get('touch') else []), touches=tkv())
        B['s12'] = self.step('s12', 0, True, True, False, ([('Qn', 1), ('Qn', 2), ('Qn', 3)] if (o.get('bal33') and not o.get('d3both')) else [('Qn', 2), ('Qn', 3)]), cert, pre=nxt(sOffK, sK, 16),
                             touches=tq([2, 3]))
        B['s13'] = self.step('s13', 1, True, True, False, [('V', 2), ('Kn', 0)], cert,
                             touches=tq([2, 3]))
        B['s14'] = self.step('s14', 0, True, False, False, [('Qn', 4), ('Qn', 5)], [('Qn', 0), ('Qn', 1), ('Qn', 2), ('Qn', 3)],
                             pre=nxt(sOffV, sV, 16), qprefetch=True, touches=tkv())
        S15 = self.step('s15', 1, False, False, False, [], [('V', 0), ('Kn', 0)], touches=tkv(),
                        post=([] if sep2 else [I(f's_cmp_eq_u32 s{sItem}, 1'), I('s_cbranch_scc1 L_tail')]))
        b15 = next(i for i, ins in enumerate(S15) if ins.kind == 'barrier') + 1
        tm = self.times(S15)
        items = []
        n15 = o.get('n15', 3)
        nexts = [('Qn', 6), ('Qn', 7), ('Kn', 1), ('Vn', 0), ('Kn', 2)]
        endp = len(S15) - 2
        for ref in nexts[:n15]: items += [('d', e, b15, endp) for e in self.tile_events(ref)]
        span = tm[endp] - tm[b15]
        ev = [(lo, hi, tm[b15] + n * span // (len(items) + 1), ins) for n, (k_, ins, lo, hi) in enumerate(items)]
        B['s15'] = self.inject(S15, ev)
        X = self.stamp()
        X += [I(f's_mov_b32 s{sItem}, 1'), I('s_nop 7')]
        if o.get('wbl2'):
            X += [I(f's_lshl_b32 s{sTt}, s{sW}, 8'), I(f's_add_u32 s{sTt}, s{sTt}, s2'), I(f's_cmp_lt_u32 s{sTt}, 8'),
                  I(f's_cselect_b32 s{sWb}, {o["wbl2"]}, 0xffff')]
        for grp in tkv() + tkv(): X += grp
        x0 = len(X)
        if not o.get('cvfirst'): X += self.first_half()
        X += self.stamp()
        c0 = len(X)
        npark = o.get('park', 0)
        cv, marks, stores = self.convert(mod=o.get('stmod1', ''), npark=npark)
        cv2 = []
        if npark:
            cv, cv2 = cv[:self.cv_split], cv[self.cv_split:]
        parked = list(self.parked)
        X += cv
        x1 = len(X)
        sec, e2 = self.second_half(full=bool(o.get('cvfirst')))
        w = [x1 + i for i, ins in enumerate(sec) if ins.op == 'PSEUDO_WAITVM']
        e1b = x1 + next(i for i, ins in enumerate(sec) if ins.kind == 'barrier') + 1
        if npark:
            pk = [I(f's_add_u32 s{sT0}, s{sRP}, {(4 if o.get("parkearly") else 6)*T}'), I(f's_sub_u32 s{sT1}, s{sT0}, s{sRING}'), I(f's_min_u32 s{sT0}, s{sT0}, s{sT1}'),
                  I(f's_add_u32 s{sPark}, s{sT0}, s{sTT}'), I(f's_sub_u32 s{sT1}, s{sPark}, s{sRING}'), I(f's_min_u32 s{sPark}, s{sPark}, s{sT1}'),
                  I(f's_cmp_lt_u32 s{sW}, 2'), I(f's_cselect_b32 s{sPark}, s{sT0}, s{sPark}'),
                  I(f's_and_b32 s{sT0}, s{sW}, 1'), I(f's_lshl_b32 s{sT0}, s{sT0}, 13'), I(f's_add_u32 s{sPark}, s{sPark}, s{sT0}'),
                  I(f's_lshl_b32 s{sT0}, s{sW}, 11'), I(f's_sub_u32 s{sPark}, s{sPark}, s{sT0}'), I(f's_sub_u32 s{sPark}, s{sPark}, {STG}'),
                  I(f'v_add_u32 v{vPK[0]}, s{sPark}, v{vSW[0]}'), I(f'v_add_u32 v{vPK[1]}, s{sPark}, v{vSW[1]}')]
            for ins in pk[1:]: ins.meta['glued'] = True
            after = [I(f'v_add_u32 v{vPK[0]}, s{sPark}, v{vSR[0]}'), I(f'v_add_u32 v{vPK[1]}, s{sPark}, v{vSR[1]}')]
            sec = sec[:e2] + pk + cv2 + after + sec[e2:]
            e2 += len(pk)
        e2 += x1
        X += sec
        s0 = len(X)
        oo_adv = [I(f's_add_u32 s{sOO[b]}, s{sOO[b]}, {ITEM_STRIDE}') for b in range(4)]
        if npark and o.get('parkearly'):
            assert sep2
            X += self.step('s0b', 0, True, True, True, iss, cert)
            mod1 = o.get('stmod1', '')
            plan = (('s1b', 1, parked[:5], [('K', 4), ('V', 3)], [], True, 120, o.get('draingap', 400)),
                    ('s2b', 0, parked[5:], [('K', 4), ('V', 3), ('K', 5), ('V', 4)], oo_adv + [I(f's_mov_b32 s{sCnt}, 4'), I('s_branch L_loop2')], False, 58, 300))
            cnt = 0
            for nm, cur_, pcs, iss_, post_, rs, limg, gap_ in plan:
                S_ = self.step(nm, cur_, True, True, False, iss_, cert, post=post_, rpskip=rs)
                ev_ = []
                t_ = 60
                lim = self.mfma_index(S_, 0, limg)
                for (cp, k, b, dq) in pcs:
                    rd = I(f'ds_read_b128 {vr(vPT,4)}, v{vPK[k]} offset:{cp*2048}', {'tile': ('P', cnt // 4), 'last': cnt % 4 == 3})
                    stq = [waitlds(regs('v', vPT, 4)), I(f'buffer_store_dwordx4 {vr(vPT,4)}, v{vO[k]}, {srd(sO)}, s{sOO[b]} offen offset:{dq*128}{mod1}')]
                    ev_.append((0, lim, t_, [rd])); ev_.append((0, self.mfma_index(S_, 0, 124), t_ + 200, stq))
                    t_ += gap_; cnt += 1
                B[nm] = self.inject(S_, ev_)
        elif npark:
            X += self.step('s0b', 0, True, True, True, iss, cert, touches=tkv(), wpskip=True)
            mod1 = o.get('stmod1', '')
            endp = [I(f's_mov_b32 s{sCnt}, 4'), I('s_branch L_loop')] if not sep2 else []
            for nm, cur_, pcs, post_, rs in (('s1b', 1, parked[:4], [], False),
                                             ('s2b', 0, parked[4:], ([] if o.get('stgpark') else oo_adv) + endp, True)):
                S_ = self.step(nm, cur_, True, True, False, iss, cert, post=post_, rpskip=rs)
                tm_ = self.times(S_)
                ev_ = []
                t_ = o.get('drain0', 150)
                lim = self.mfma_index(S_, 0, 120)
                for n_, (cp, k, b, dq) in enumerate(pcs):
                    rd = I(f'ds_read_b128 {vr(vPT,4)}, v{vPK[k]} offset:{cp*2048}', {'tile': ('P', 0 if nm == 's1b' else 1), 'last': n_ == len(pcs) - 1})
                    stq = [waitlds(regs('v', vPT, 4)), I(f'buffer_store_dwordx4 {vr(vPT,4)}, v{vO[k]}, {srd(sO)}, s{sOO[b]} offen offset:{dq*128}{mod1}')]
                    ev_.append((0, lim, t_, [rd])); ev_.append((0, lim, t_ + 220, stq))
                    t_ += o.get('draingap', 440)
                B[nm] = self.inject(S_, ev_)
            if sep2:
                S3 = self.step('s3b', 1, True, True, False, [('K', 4), ('V', 3), ('K', 5)], cert, post=(oo_adv if o.get('stgpark') else []))
                if o.get('stgpark'):
                    ev_ = []; t_ = 150
                    lim = self.mfma_index(S3, 0, 120)
                    for (k, b, dq) in self.stg_parked:
                        rd = I(f'ds_read_b128 {vr(vPT,4)}, v{vSR[k]}')
                        stq = [waitlds(regs('v', vPT, 4)), I(f'buffer_store_dwordx4 {vr(vPT,4)}, v{vO[k]}, {srd(sO)}, s{sOO[b]} offen offset:{dq*128}{mod1}')]
                        ev_.append((0, lim, t_, [rd])); ev_.append((0, lim, t_ + 220, stq)); t_ += 500
                    S3 = self.inject(S3, ev_)
                B['s3b'] = S3
                B['s4b'] = self.step('s4b', 0, True, True, False, [('V', 3), ('K', 5), ('V', 4)], cert,
                                     post=[I(f's_mov_b32 s{sCnt}, 3'), I('s_branch L_loop2')])
        if sep2 and npark:
            self.item2_blocks(B, cert)
        elif sep2:
            X += self.step('s0b', 0, True, True, True, iss, cert, post=oo_adv)
            self.item2_blocks(B, cert)
        elif not npark:
            X += self.step('s0b', 0, True, True, True, iss, cert, touches=tkv(),
                           post=oo_adv + [I(f's_mov_b32 s{sCnt}, 5'), I('s_branch L_loop')])
        tm = self.times(X)
        gb0 = self.mfma_index(X, s0, gbar - 4)
        conv = {'Qn': 'Q', 'Kn': 'K', 'Vn': 'V'}
        items = []
        for ref in nexts[n15:]:
            r = (conv[ref[0]], ref[1])
            items += [('d', e, x0, w[0] if r[0] == 'Q' else (w[1] if r in (('K', 1), ('V', 0)) else gb0)) for e in self.tile_events(r)]
        if o.get('dropst'): stores = stores[:32 - o['dropst']]
        lagc = o.get('stlag', 1)
        st = [('s', ins, (c0 + marks[ci + lagc]) if ci + lagc < len(marks) else x1, self.mfma_index(X, s0, dl - 2)) for ci, dl, ins in stores]
        v1 = [('d', e, e1b, gb0) for e in self.tile_events(('V', 1))]
        k3 = [('d', e, e2, gb0) for ref in [('K', 3), ('V', 2)] for e in self.tile_events(ref)]
        if npark and o.get('parkearly'):
            skip = [I('s_nop 0', {'reserve': ('P', 0)}), I('s_nop 0', {'reserve': ('P', 1)})] + self.ptr_adv(sWP, sTw, 2 * T)
            k3[0] = (k3[0][0], skip + k3[0][1], k3[0][2], k3[0][3])
        sgap = o.get('sgap', 145)
        merged = []
        t = tm[st[0][2]]
        pend = [(tm[e1b], v1), (tm[e2], k3)]
        for it in st:
            while pend and t >= pend[0][0]:
                merged += pend.pop(0)[1]
            merged.append(it)
            t = max(t, tm[it[2]]) + sgap
        for _, g in pend: merged += g
        evs = self.paced(tm, items + merged, tm[x0])
        if o.get('tstamps'):
            evs = [(lo, hi, t_, ins + self.stamp(True)) for lo, hi, t_, ins in evs]
            X = self.stamp(True) + X + self.stamp(True)
            evs = [(lo + len(self.stamp(True)), hi + len(self.stamp(True)), t_, ins) for lo, hi, t_, ins in evs]
            self.evkinds = [k for k, _, _, _ in items + merged]
            print('event kinds:', ''.join(self.evkinds))
        B['trans'] = self.inject(X, evs)
        fin = []
        if o.get('stamps'):
            fin = [I('s_memrealtime s[60:61]'), I('s_waitcnt lgkmcnt(0)'),
                   I('s_mov_b32 m0, s54'), I('s_nop 0'), I('v_writelane_b32 v127, s52, m0'),
                   I('v_writelane_b32 v127, s58, 62'), I('v_writelane_b32 v127, s60, 63'),
                   I('s_mov_b32 s64, s56'), I('s_and_b32 s65, s57, 0xffff'), I('s_mov_b32 s66, 0x1000000'), I('s_mov_b32 s67, 0x20000'),
                   I('s_lshl_b32 s68, s2, 2'), I(f's_add_u32 s68, s68, s{sW}'), I('s_lshl_b32 s68, s68, 8'),
                   I('v_lshlrev_b32 v126, 2, v0'),
                   I('buffer_store_dword v127, v126, s[64:67], s68 offen'), I('s_waitcnt vmcnt(0)')]
            if o.get('stamps') == 3:
                fin += [I('v_writelane_b32 v124, s74, m0'), I('s_add_u32 s68, s68, 0x40000'),
                        I('buffer_store_dword v124, v126, s[64:67], s68 offen'), I('s_waitcnt vmcnt(0)')]
        if o.get('dbgout'):
            lanes = o['dbgout']
            fin += [I('s_load_dwordx2 s[70:71], s[0:1], 32'), I('s_waitcnt lgkmcnt(0)'),
                    I('s_mov_b32 s64, s70'), I('s_and_b32 s65, s71, 0xffff'), I('s_mov_b32 s66, 256'),
                    I('v_mov_b32 v125, 0'), I('v_readlane_b32 s72, v124, 0'), I('s_nop 3')]
            for n, lane in enumerate(lanes):
                fin += [I(f'v_readlane_b32 s73, v124, {lane}'), I('s_nop 3'), I('s_sub_u32 s73, s73, s72'), I('s_nop 3'), I(f'v_writelane_b32 v125, s73, {n}')]
            fin += [I('s_and_b32 s68, s2, 0xef'), I(f's_add_u32 s68, s68, s{sW}'), I('s_cmp_eq_u32 s68, 0'), I('s_cbranch_scc0 L_exit'),
                    I('s_lshr_b32 s68, s2, 4'), I('s_lshl_b32 s68, s68, 5'),
                    I('v_cmp_gt_u32 vcc, 8, v0'), I('s_and_saveexec_b64 s[84:85], vcc'),
                    I('buffer_store_dword v125, v126, s[64:67], s68 offen'), I('s_waitcnt vmcnt(0)')]
        if o.get('spin'):
            fin += [I('s_memrealtime s[60:61]'), I('s_waitcnt lgkmcnt(0)'), I('s_sub_u32 s62, s60, s58')]
            if o['spin'] == 'fixed': fin += [I('s_mov_b32 s62, 30000')]
            else: fin += [I('s_mul_i32 s62, s62, 5')]
            fin += [I('L_spin:'), I('s_memrealtime s[60:61]'), I('s_waitcnt lgkmcnt(0)'), I('s_sub_u32 s63, s60, s58'),
                    I('s_cmp_lt_u32 s63, s62'), I('s_cbranch_scc1 L_spin')]
        cv, marks, stores = self.convert(mod=o.get('stmod', ''))
        ev = [(marks[ci + o.get('stlag', 1)] if ci + o.get('stlag', 1) < len(marks) else len(cv), None, None, ins) for ci, dl, ins in stores]
        cv = self.inject(cv, ev)
        B['tail'] = [I('L_tail:')] + self.stamp() + [I('s_nop 7')] + cv + self.stamp() + [I('s_waitcnt vmcnt(0)')] + self.stamp() + fin + [I('L_exit:'), I('s_endpgm')]
        self.B = B
        order = ['setup', 'head'] + ([] if o.get('d3both') else ['s1', 's2']) + ['s11', 's12', 's13', 's14', 's15', 'trans'] + (['s1b', 's2b'] if o.get('park') else []) + (['s3b', 's4b'] if (o.get('park') and o.get('sep2') and not o.get('parkearly')) else []) + \
                (['s1c', 's2c', 's3c', 's4c', 's11c', 's12c', 's13c', 's14c', 's15c'] if o.get('sep2') else []) + ['tail']
        def ctx(item, j, name):
            def tile(ref):
                k, n = ref
                if k == 'Qn': return (item + 1, 'Q', n)
                if k == 'Kn': return (item + 1, 'K', n)
                if k == 'Vn': return (item + 1, 'V', n)
                if k == 'K0': return (item, 'K', 0)
                if k == 'P': return (item, 'P', n)
                if k == 'Q': return (item, 'Q', n)
                return (item, k, j + n)
            return {'tile': tile, 'name': f'{name}@item{item},j{j}', 'dummy': lambda t: t[0] >= 2}
        trace = [(B['setup'], ctx(0, 0, 'setup')), (B['head'], ctx(0, 0, 'head'))]
        for item in range(2):
            seq = []
            if o.get('sep2') and (item == 1 or o.get('d3both')):
                if item == 1 and o.get('park') and o.get('parkearly'):
                    seq += [('s1b', 1), ('s2b', 2)]
                    for it in range(4): seq += [('s3c', 3 + 2 * it), ('s4c', 4 + 2 * it)]
                elif item == 1 and o.get('park'):
                    seq += [('s1b', 1), ('s2b', 2), ('s3b', 3), ('s4b', 4)]
                    for it in range(1, 4): seq += [('s3c', 3 + 2 * it), ('s4c', 4 + 2 * it)]
                else:
                    seq += [('s1c', 1), ('s2c', 2)]
                    for it in range(4): seq += [('s3c', 3 + 2 * it), ('s4c', 4 + 2 * it)]
                if item == 1: seq += [('s11c', 11), ('s12c', 12), ('s13c', 13), ('s14c', 14), ('s15c', 15)]
                else: seq += [('s11', 11), ('s12', 12), ('s13', 13), ('s14', 14), ('s15', 15)]
            else:
                for it in range(5):
                    if it == 0 and item == 1 and o.get('park'): seq += [('s1b', 1), ('s2b', 2)]
                    else: seq += [('s1', 1 + 2 * it), ('s2', 2 + 2 * it)]
                seq += [('s11', 11), ('s12', 12), ('s13', 13), ('s14', 14), ('s15', 15)]
            for n, j in seq: trace.append((B[n], ctx(item, j, n)))
            if item == 0: trace.append((B['trans'], ctx(1, 0, 'trans')))
        trace.append((B['tail'], ctx(1, 15, 'tail')))
        errs, _ = resolve(trace)
        lin = []
        for blk, c in trace: lin += expand(blk)
        errs += hazards(lin, 'trace')
        rare = {b: self.rare(b) for b in (0, 1)}
        resc = self.rescale()
        blk_of = {'s0a': 'head', 's0b': 'trans'}
        if o.get('d3both'): self.rare_sites = [x for x in self.rare_sites if x[0] not in ('s1', 's2')]
        for site, buf in self.rare_sites:
            blk = expand(B[blk_of.get(site, site)])
            errs += hazards(blk + rare[buf] + resc + expand(B['s1' if buf == 1 else 's2'])[:60], 'rare@' + site)
        out = []
        for n in order: out += expand(B[n])
        for site, buf in self.rare_sites:
            out += [I(f'L_rare_{site}:'), I(f's_call_b64 s[{sRet}:{sRet+1}], L_rarefn_{buf}'), I(f's_branch L_cont_{site}')]
        for b in (0, 1): out += rare[b]
        out += resc
        out.append(I('L_code_end:'))
        return out, errs

HEADER = """; MHA forward (softmax(Q K^T / 16) V), bf16 in / bf16 out, 256 heads x 512 queries x 512 keys x 256 dims, gfx950.
;
; ds_read_b128 / ds_read_b64_tr_b16).  S^T = K Q^T and O^T = V^T P^T use v_mfma_f32_16x16x32_bf16; Q and half of O
; Output: O/l -> bf16 -> LDS transpose -> full-line stores.
; @launch grid=(256,1,1) block=(256,1,1) lds={lds}
.amdgcn_target "amdgcn-amd-amdhsa--gfx950"
.text
.globl {name}
.p2align 8
.type {name},@function
{name}:
"""
FOOTER = """.section .rodata,"a"
.p2align 6
.amdhsa_kernel {name}
  .amdhsa_next_free_vgpr 512
  .amdhsa_next_free_sgpr 96
  .amdhsa_accum_offset 256
  .amdhsa_group_segment_fixed_size 0
  .amdhsa_kernarg_size 48
  .amdhsa_user_sgpr_count 2
  .amdhsa_user_sgpr_kernarg_segment_ptr 1
  .amdhsa_system_sgpr_workgroup_id_x 1
.end_amdhsa_kernel
"""

def generate(opt, path):
    g = Gen(opt)
    body, errs = g.build()
    for e in errs[:40]: print('ERR', e)
    txt = HEADER.format(name=NAME, lds=LDS_BYTES)
    for ins in body:
        txt += (ins.text if ins.kind == 'label' else '    ' + ins.text) + '\n'
    txt += FOOTER.format(name=NAME)
    open(path, 'w').write(txt)
    return g, errs

if __name__ == '__main__':
    opt = json.loads(sys.argv[2]) if len(sys.argv) > 2 else {}
    g, errs = generate(opt, sys.argv[1])
    print('errors:', len(errs))
    for n, c in g.costs.items(): print(n, ''.join(str(x) for x in c), sum(c))
```

```python
import sys, json
from asmlib import I, waitlds, waitvm, resolve, expand, hazards

NAME = 'standalone__mha_softmax__near_ridge_kernel'
T = 16640
NS = 9
RING = T * NS
STG = RING
LDS_BYTES = RING + 8192
ITEM_STRIDE = 128 * 262144
TENSOR_BYTES = 256 * 262144

vKl, vVl, vK, vV = 1, 2, 3, 4
vD = [5, 6, 7, 8]
vO = [9, 10]
vSR = [11, 122]
vNM = [12, 13, 14, 15]
vL = [16, 17, 18, 19]
vXM = 20
vT = 21
SB = [24, 56]
PB = 88
FB = [104, 108, 112, 116]
vSW = [120, 121]
OLO = 128
vTK, vTV, vTQ, vJ = 123, 125, 22, 23
sTK, sTV, sTt = 81, 82, 83
sWb = 87
sPark = 89
sKW = 90
vKW = 123
vPK = [22, 23]
vPT = 124
sQ, sK, sV, sO = 4, 8, 12, 16
sW, sC, sItem = 20, 21, 22
sOffQ, sOffK, sOffV = 23, 24, 25
sRP, sWP, sWL = 28, 29, 30
sTw = 31
sCnt, sT0, sT1 = 32, 33, 34
sThr = 35
sRet = 36
sTT, sRING = 38, 39
sP = 40
sTr = 48
sOO = [76, 77, 78, 79]
sWT = 80

def srd(b): return f's[{b}:{b+3}]'
def vr(b, n): return f'v[{b}:{b+n-1}]' if n > 1 else f'v{b}'
def ar(b, n): return f'a[{b}:{b+n-1}]' if n > 1 else f'a{b}'
def Qreg(b, ks): return ar((b * 8 + ks) * 4, 4)
def Obase(d16, b):
    if d16 < 8: return ('v', OLO + (d16 * 4 + b) * 4)
    return ('a', 128 + ((d16 - 8) * 4 + b) * 4)
def Oreg(d16, b):
    f, r = Obase(d16, b)
    return vr(r, 4) if f == 'v' else ar(r, 4)
def Sreg(buf, b): return SB[buf] + b * 8
def regs(file, b, n): return [(file, i) for i in range(b, b + n)]
PI = [0, 2, 1, 3]

class Gaps:
    def __init__(self, n, cap=2):
        self.n = n; self.cap = cap
        self.mf = [None] * n
        self.sh = [[] for _ in range(n)]
        self.fx = [[] for _ in range(n)]
        self.fl = [[] for _ in range(n)]
        self.cost = [0] * n
    def fixed(self, g, ins, c=1):
        self.fx[g].append(ins); self.cost[g] += c
    def scalar(self, ins, g0):
        g = g0
        while g < self.n:
            if not self.sh[g]:
                self.sh[g].append(ins); return g
            g += 1
        g = min(g0, self.n - 1)
        self.sh[g].append(ins)
        return g
    def place(self, ins, g0, c=1, cap=None, fixed=False):
        g = g0
        while g < self.n - 1 and self.cost[g] + c > (cap or (self.cap if self.mf[g] is not None else 4)): g += 1
        (self.fx if fixed else self.fl)[g].append(ins); self.cost[g] += c
        return g
    def emit(self):
        out = []
        for g in range(self.n):
            fl = self.fl[g]
            if self.mf[g] is not None: out.append(self.mf[g])
            else: fl = [i for i in fl if i.kind == 'trans'] + [i for i in fl if i.kind != 'trans']
            out += self.sh[g] + self.fx[g] + fl
        return out

class Gen:
    def __init__(self, opt):
        self.o = opt
        self.rare_sites = []
        self.costs = {}

    def ptr_adv(self, p, tmp, amount=None):
        a = f's{sTT}' if amount is None else str(amount)
        return [I(f's_add_u32 s{p}, s{p}, {a}'), I(f's_sub_u32 s{tmp}, s{p}, s{sRING}'), I(f's_min_u32 s{p}, s{p}, s{tmp}')]
    def rp_adv(self): return self.ptr_adv(sRP, sTr)
    def wp_adv(self): return self.ptr_adv(sWP, sTw)
    def tile_src(self, ref):
        return {'Q': (sQ, sOffQ), 'K': (sK, sOffK), 'V': (sV, sOffV)}[ref[0][0]]
    def dma(self, ref, n):
        s, off = self.tile_src(ref)
        mod = self.o.get('ldmod', {}).get(ref[0][0], '')
        return I(f'buffer_load_dwordx4 v{vD[n]}, {srd(s)}, s{off} offen offset:{n*1040}{mod} lds', {'tile': ref, 'piece': n})
    def m0set(self): return I(f's_add_u32 m0, s{sWP}, s{sWL}')
    def touch(self, kind, rel=None, sreg=None):
        sr = {'Q': sQ, 'K': sK, 'V': sV}[kind]
        va = {'Q': vTQ, 'K': vTK, 'V': vTV}[kind]
        mod = self.o.get('tmod', '')
        if sreg is not None:
            return [I(f'buffer_load_dword v{vJ}, v{va}, {srd(sr)}, s{sreg} offen{mod}'), I(f's_add_u32 s{sreg}, s{sreg}, 0x4000')]
        off = {'Q': sOffQ, 'K': sOffK, 'V': sOffV}[kind]
        if rel == 0: return [I(f'buffer_load_dword v{vJ}, v{va}, {srd(sr)}, s{off} offen{mod}')]
        return [I(f's_add_u32 s{sTt}, s{off}, {rel*0x4000}'), I(f'buffer_load_dword v{vJ}, v{va}, {srd(sr)}, s{sTt} offen{mod}')]
    def tgroup(self, wave, items):
        self.tlabel = getattr(self, 'tlabel', 0) + 1
        lab = f'L_t{self.tlabel}'
        mod = self.o.get('tmod', '')
        pre = []; loads = []
        tmp = [sTt, 84, 85, 86]
        for n, (kind, sreg, add) in enumerate(items):
            sr = {'Q': sQ, 'K': sK, 'V': sV}[kind]
            va = vTQ if kind == 'Q' else vTK
            src = sreg if sreg is not None else {'Q': sOffQ, 'K': sOffK, 'V': sOffV}[kind]
            if add:
                pre.append(I(f's_add_u32 s{tmp[n]}, s{src}, {add}')); src = tmp[n]
            ld = I(f'buffer_load_dword v{vJ}, v{va}, {srd(sr)}, s{src} offen{mod}')
            ld.kind = 'salu'
            loads.append(ld)
        unit = pre + [I(f's_cmp_eq_u32 s{sW}, {wave}'), I(f's_cbranch_scc0 {lab}')] + loads + [I(f'{lab}:')]
        for ins in unit[1:]: ins.meta['glued'] = True
        post = [I(f's_add_u32 s{sreg}, s{sreg}, 0x4000') for kind, sreg, add in items if sreg is not None and not add]
        return unit + post

    def issue_tile_linear(self, ref):
        s, off = self.tile_src(ref)
        return [self.m0set()] + self.wp_adv() + [self.dma(ref, n) for n in range(4)] + [I(f's_add_u32 s{off}, s{off}, 0x4000')]
    def kread(self, f, fb, ref, last=False, addr=vK):
        a, ks = f >> 3, f & 7
        off = a * 512 + (ks >> 2) * 256 + (ks & 3) * 16
        return I(f'ds_read_b128 {vr(FB[fb],4)}, v{addr} offset:{off}', {'tile': ref, 'last': last})
    def qread(self, b, ks, addr, ref, last=False):
        off = (b & 1) * 512 + (ks >> 2) * 256 + (ks & 3) * 16
        return I(f'ds_read_b128 {Qreg(b,ks)}, v{addr} offset:{off}', {'tile': ref, 'last': last})
    def vread(self, d16, a, fb, ref, last=False):
        return I(f'ds_read_b64_tr_b16 {vr(FB[fb]+2*a,2)}, v{vV} offset:{a*512+d16*32}', {'tile': ref, 'last': last})
    def mf_qk(self, buf, f, b, fb):
        a, ks = f >> 3, f & 7
        d = vr(Sreg(buf, b) + 4 * a, 4)
        c = '0' if ks == 0 else d
        return I(f'v_mfma_f32_16x16x32_bf16 {d}, {vr(FB[fb],4)}, {Qreg(b,ks)}, {c}')
    def mf_pv(self, d16, b, fb, first):
        d = Oreg(d16, b)
        c = '0' if first else d
        return I(f'v_mfma_f32_16x16x32_bf16 {d}, {vr(FB[fb],4)}, {vr(PB+4*b,4)}, {c}')
    def stamp(self, force=False):
        if not self.o.get('stamps'): return []
        if self.o.get('tstamps') and not force: return []
        if self.o.get('streg'):
            L = [I('s_mov_b32 s55, m0'), I('s_mov_b32 m0, s54'), I('s_add_u32 s54, s54, 1'),
                 I(f'v_writelane_b32 v{self.o["streg"]}, s74, m0'), I('s_memrealtime s[74:75]'), I('s_mov_b32 m0, s55'), I('s_nop 0')]
            for ins in L[1:]: ins.meta['glued'] = True
            return L
        L = [I('s_mov_b32 s55, m0'), I('s_mov_b32 m0, s54'), I('s_add_u32 s54, s54, 1'), I('v_writelane_b32 v127, s52, m0'), I('s_memtime s[52:53]')] + \
            ([I('v_writelane_b32 v124, s74, m0'), I('s_memrealtime s[74:75]')] if self.o.get('stamps') == 3 else []) + [I('s_mov_b32 m0, s55'), I('s_nop 0')]
        for ins in L[1:]: ins.meta['glued'] = True
        return L

    def sched_tiles(self, G, issues, g0, stride):
        g = g0
        for ref in issues:
            s, off = self.tile_src(ref)
            gm = G.scalar(self.m0set(), g)
            g = max(g, gm)
            last = g
            for n in range(4):
                gg = G.place(self.dma(ref, n), g if n else g + 1, 2, fixed=True)
                last = gg
                g = gg + stride
            wa = self.wp_adv()
            ga = G.scalar(wa[0], gm + 1); ga = G.scalar(wa[1], ga + 1); ga = G.scalar(wa[2], ga + 1)
            gs = G.scalar(I(f's_add_u32 s{off}, s{off}, 0x4000'), last + 1)
            g = max(g - stride, last, ga, gs) + 1
        return g

    def step(self, name, cur, has_qk, next_qk, first_pv, issues, certify, pre=[], post=[], qprefetch=False, late=[], touches=[], wpskip=False, rpskip=False):
        o = self.o
        nxt = 1 - cur
        G = Gaps(128)
        Kc, Vc, Kn = ('K', 1), ('V', 0), ('K', 2)
        if has_qk:
            for g in range(64):
                if o.get('chain2'):
                    pr, r = g >> 3, g & 7
                    f, b = 2 * pr + (r & 1), r >> 1
                    G.mf[g] = self.mf_qk(nxt, f, b, f % 4)
                else:
                    G.mf[g] = self.mf_qk(nxt, g >> 2, g & 3, (g >> 2) % 4)
        dord = list(range(16))
        if first_pv and o.get('direct'): dord = list(range(8, 16)) + list(range(8))
        for g in range(64, 128):
            G.mf[g] = self.mf_pv(dord[(g >> 2) - 16], g & 3, (g >> 2) % 4, first_pv)
        ch = bool(o.get('chain2'))
        for f in range(32):
            g = 4 * f + 3
            gr = g + 3 if (ch and has_qk and f < 16 and f % 2 == 0) else g
            nf = f + 4
            if nf < 16:
                if has_qk: G.fixed(gr, self.kread(nf, nf % 4, Kc, last=(nf == 15)))
            elif nf < 32:
                G.fixed(gr, self.vread(dord[nf - 16], 0, nf % 4, Vc))
                G.fixed(gr + 1, self.vread(dord[nf - 16], 1, nf % 4, Vc, last=(nf == 31)))
            elif next_qk:
                G.fixed(g, self.kread(nf - 32, nf % 4, Kn))
            if f + 1 < 32:
                if f + 1 >= 16: G.sh[g].append(waitlds(regs('v', FB[(f + 1) % 4], 4)))
                elif has_qk:
                    if not ch: G.sh[g].append(waitlds(regs('v', FB[(f + 1) % 4], 4)))
                    elif f % 2 == 1: G.sh[g].append(waitlds(regs('v', FB[(f + 1) % 4], 4) + regs('v', FB[(f + 2) % 4], 4)))
            elif next_qk:
                G.sh[g].append(waitlds(regs('v', FB[0], 4) + (regs('v', FB[1], 4) if ch else [])))
        gb = o.get('gbar', 70) if has_qk else 2
        G.scalar(waitvm(certify), gb - 2)
        G.sh[gb].append(I('s_barrier'))
        if wpskip:
            for n in range(2):
                r = I('s_nop 0', {'reserve': ('P', n)})
                G.sh[gb - 3].append(r)
            wa = self.ptr_adv(sWP, sTw, 2 * T)
            G.sh[gb - 3] += wa
        self.sched_tiles(G, issues, gb + 1, {0: 1, 1: 5, 2: o.get('dstride', 5), 3: 3, 4: 2}[len(issues)])
        if o.get('keepwarm') and name in o['keepwarm']:
            G.place(I(f'buffer_load_dwordx4 v[124:127], v{vKW}, s[64:67], s{sKW} offen'), 20, 2, fixed=True)
        gt = o.get('gtouch', 8)
        for grp in touches:
            if o.get('touch') == 2:
                g = gt
                while G.cost[g] > 0 or G.sh[g]: g += 1
                G.fx[g] += grp; G.cost[g] += 2
                gt = g + 8
                continue
            for ins in grp:
                if ins.kind == 'vload': gt = G.place(ins, gt, 2, fixed=True) + 1
                else: gt = G.scalar(ins, gt) + 1
            gt += 6
        G.fixed(1, I(f'v_add_u32 v{vV}, s{sRP}, v{vVl}'))
        ra = self.rp_adv()
        ga = G.scalar(ra[0], 2); ga = G.scalar(ra[1], ga + 1); ga = G.scalar(ra[2], ga + 1)
        if rpskip:
            ra = self.ptr_adv(sRP, sTr, 2 * T)
            ga = G.scalar(ra[0], ga + 1); ga = G.scalar(ra[1], ga + 1); ga = G.scalar(ra[2], ga + 1)
        if next_qk:
            assert ga < 48
            G.fixed(49, I(f'v_add_u32 v{vK}, s{sRP}, v{vKl}'))
            ra = self.rp_adv()
            ga = G.scalar(ra[0], 50); ga = G.scalar(ra[1], ga + 1); ga = G.scalar(ra[2], ga + 1)
        if qprefetch:
            G.sh[gb + 1].append(I(f's_add_u32 s{sT0}, s{sRP}, s{sWT}')); G.sh[gb + 2].append(I(f's_sub_u32 s{sT1}, s{sT0}, s{sRING}'))
            G.sh[gb + 3].append(I(f's_min_u32 s{sT0}, s{sT0}, s{sT1}'))
            gq = G.place(I(f'v_add_u32 v{vT}, s{sT0}, v{vKl}'), gb + 4, fixed=True)
            ra = self.ptr_adv(sRP, sTr, 4 * T)
            ga = G.scalar(ra[0], gb + 5); ga = G.scalar(ra[1], ga + 1); ga = G.scalar(ra[2], ga + 1)
            gq += 1
            for b in range(2):
                for ks in range(8):
                    n = b * 8 + ks
                    gq = G.place(self.qread(b, ks, vT, ('Qn', n // 4), last=(n % 4 == 3)), gq, fixed=True) + 2
        ge = 0
        adds = []
        cvts = []
        for b in range(4):
            base = Sreg(cur, b)
            for i in range(8):
                r = base + i
                g = G.place(I(f'v_exp_f32 v{r}, v{r}'), ge, 2)
                ge = g + 1
                if i & 1: cvts.append((g + 1, b, I(f'v_cvt_pk_bf16_f32 v{PB + 4*b + i//2}, v{r-1}, v{r}')))
                adds.append((g + 1, I(f'v_add_f32 v{vL[b]}, v{vL[b]}, v{r}')))
        for g0, b, ins in cvts:
            gc = G.place(ins, g0)
            assert gc < 63 + b, (name, 'P late', b, gc)
        late = []
        if o.get('noadd'): adds = []
        ga = 0
        for g0, ins in adds:
            g = max(g0, ga)
            while g < 64 and G.cost[g] + 1 > (2 if G.mf[g] is not None else 4): g += 1
            if g < 64 and not late:
                G.fl[g].append(ins); G.cost[g] += 1; ga = g
            else:
                late.append((g0, ins))
        items = [(g0, ins, None) for g0, ins in late]
        if has_qk:
            xs = [(Sreg(nxt, b) + 4 * a + r, b, 31 if a == 0 else (57 + 2 * b if o.get('chain2') else 60 + b)) for a in range(2) for b in range(4) for r in range(4)]
            rs = [x[0] for x in xs]
            seq = []
            for n, (r, b, ready) in enumerate(xs):
                seq.append((ready + 5, I(f'v_fma_f32 v{r}, v{r}, s{sC}, v{vNM[b]}')))
                if o.get('nomax'): continue
                if n == 2: seq.append((0, I(f'v_max3_f32 v{vXM}, v{rs[0]}, v{rs[1]}, v{rs[2]}')))
                elif n >= 4 and n % 2 == 0: seq.append((0, I(f'v_max3_f32 v{vXM}, v{vXM}, v{rs[n-1]}, v{rs[n]}')))
            if o.get('nomax'): seq.append((0, I(f'v_mov_b32 v{vXM}, 0')))
            else: seq.append((0, I(f'v_max3_f32 v{vXM}, v{vXM}, v{rs[31]}, v{rs[31]}')))
            merged = []
            k = 0
            for n, it in enumerate(seq):
                merged.append(it)
                while k < len(late) and k * len(seq) <= n * len(late): merged.append(late[k]); k += 1
            merged += late[k:]
        else:
            merged = late
        g_lo, g_hi = o.get('gx0', 64), o.get('gx1', 122)
        free = [g for g in range(g_lo, g_hi + 1) for _ in range(max(0, 2 - G.cost[g]))]
        gprev = g_lo
        for n, (g0, ins) in enumerate(merged):
            want = free[min(len(free) - 1, n * len(free) // max(1, len(merged)))]
            gprev = G.place(ins, max(want, g0, gprev))
        if has_qk:
            G.place(I(f'v_cmp_lt_f32 vcc, s{sThr}, v{vXM}'), max(gprev + 1, 125), 1, cap=3)
        out = list(pre) + self.stamp() + G.emit()
        if has_qk:
            self.rare_sites.append((name, nxt))
            out.append(I(f's_cbranch_vccnz L_rare_{name}'))
            out.append(I(f'L_cont_{name}:'))
        out += post
        self.costs[name] = G.cost
        return out

    def setup(self):
        o = self.o
        L = []
        A = lambda s: L.append(I(s))
        A(f's_cmp_ge_u32 s2, 256')
        A(f's_cbranch_scc1 L_exit')
        A(f's_load_dwordx4 s[{sP}:{sP+3}], s[0:1], 0')
        A(f's_load_dwordx4 s[{sP+4}:{sP+7}], s[0:1], 16')
        if o.get('stamps'):
            A(f's_load_dwordx2 s[56:57], s[0:1], 40')
            A(f's_memrealtime s[58:59]')
            A(f's_memtime s[52:53]')
            A(f's_mov_b32 s54, 0')
            A(f'v_mov_b32 v127, 0')
            A(f'v_mov_b32 v124, 0')
            if o.get('streg'): A(f'v_mov_b32 v{o["streg"]}, 0')
            A(f's_memrealtime s[74:75]')
        if o.get('spin'):
            A(f's_memrealtime s[58:59]')
        t0, t1, t2, t3 = 24, 25, 26, 27
        A(f'v_lshrrev_b32 v{vT}, 6, v0')
        A(f'v_and_b32 v0, 63, v0')
        A(f'v_readfirstlane_b32 s{sW}, v{vT}')
        A(f'v_lshrrev_b32 v{t0}, 5, v0')
        A(f'v_and_b32 v{t1}, 31, v0')
        A(f'v_lshlrev_b32 v{vD[0]}, 13, v{t0}')
        A(f'v_lshl_add_u32 v{vD[0]}, v{t1}, 4, v{vD[0]}')
        A(f'v_lshl_add_u32 v{vD[0]}, v{vT}, 9, v{vD[0]}')
        for n in range(1, 4):
            A(f'v_add_u32 v{vD[n]}, {n*1008}, v{vD[0]}')
        A(f's_and_b32 s{sT0}, s2, 7')
        A(f's_lshr_b32 s{sT1}, s2, 4')
        if o.get('contig'):
            A(f's_lshl_b32 s{sT0}, s{sT0}, 4')
        else:
            A(f's_lshl_b32 s{sT1}, s{sT1}, 3')
        A(f's_add_u32 s{sT0}, s{sT0}, s{sT1}')
        A(f's_lshl_b32 s{sOffK}, s{sT0}, 18')
        A(f's_mov_b32 s{sOffV}, s{sOffK}')
        A(f's_bfe_u32 s{sT1}, s2, 0x10003')
        A(f's_lshl_b32 s{sT1}, s{sT1}, 17')
        A(f's_add_u32 s{sOffQ}, s{sOffK}, s{sT1}')
        A(f's_mul_i32 s{sWL}, s{sW}, 4160')
        A(f's_mov_b32 s{sTT}, {T}')
        A(f's_mov_b32 s{sRING}, {RING}')
        A(f's_mov_b32 s{sRP}, {4*T}')
        A(f's_mov_b32 s{sWP}, 0')
        A(f's_mov_b32 s{sItem}, 0')
        A(f's_mov_b32 s{sWb}, 0xffff')
        A(f's_lshl_b32 s{sT0}, s{sW}, 14')
        A(f's_add_u32 s{sOO[0]}, s{sOffQ}, s{sT0}')
        A(f's_add_u32 s{sOO[1]}, s{sOO[0]}, 0x2000')
        A(f's_add_u32 s{sOO[2]}, s{sOO[0]}, 0x10000')
        A(f's_add_u32 s{sOO[3]}, s{sOO[0]}, 0x12000')
        A(f's_mul_i32 s{sWT}, s{sW}, {T}')
        A(f's_waitcnt lgkmcnt(0)')
        for i, b in enumerate((sQ, sK, sV, sO)):
            A(f's_mov_b32 s{b}, s{sP+2*i}')
            A(f's_and_b32 s{b+1}, s{sP+2*i+1}, 0xffff')
            A(f's_mov_b32 s{b+2}, {0 if (b == sO and o.get("nostore")) else TENSOR_BYTES}')
            A(f's_mov_b32 s{b+3}, 0x20000')
        if o.get('stagger'):
            A('s_bitcmp1_b32 s2, 4')
            A('s_cbranch_scc0 L_nocode')
            for rep in range(o['stagger']):
                self.pf_done = False
                L += self.code_prefetch(rep)
                A('s_waitcnt vmcnt(0)')
            A('L_nocode:')
        if o.get('touch'):
            if o['touch'] == 2:
                A(f'v_lshlrev_b32 v{vTQ}, 7, v0')
                A(f's_bfe_u32 s{sTt}, s2, 0x10003')
                A(f's_lshl_b32 s{sTt}, s{sTt}, 13')
                A(f'v_add_u32 v{vTK}, s{sTt}, v{vTQ}')
                A(f's_add_u32 s{sTK}, s{sOffK}, {6*0x4000}')
                A(f's_add_u32 s{sTV}, s{sOffV}, {5*0x4000}')
        if o.get('touch') == 1:
            A(f'v_lshlrev_b32 v{vTK}, 7, v0')
            A(f's_bfe_u32 s{sTt}, s2, 0x10003')
            A(f's_lshl_b32 s{sTt}, s{sTt}, 13')
            A(f'v_add_u32 v{vTK}, s{sTt}, v{vTK}')
            A(f'v_mov_b32 v{vTV}, v{vTK}')
            A(f'v_lshlrev_b32 v{vTQ}, 7, v0')
            A(f's_and_b32 s{sTt}, s{sW}, 1')
            A(f's_lshl_b32 s{sTt}, s{sTt}, 13')
            A(f'v_add_u32 v{vTQ}, s{sTt}, v{vTQ}')
            for reg, cmp_ in ((vTK, f's_cmp_eq_u32 s{sW}, 0'), (vTV, f's_cmp_eq_u32 s{sW}, 1'), (vTQ, f's_cmp_ge_u32 s{sW}, 2')):
                A(cmp_)
                A(f's_cselect_b32 s{sTt}, 0, 0x40000000')
                A(f'v_add_u32 v{reg}, s{sTt}, v{reg}')
            A(f's_add_u32 s{sTK}, s{sOffK}, {6*0x4000}')
            A(f's_add_u32 s{sTV}, s{sOffV}, {5*0x4000}')
            if o.get('headtouch', 1):
                if o.get('throttle'):
                    A('s_bitcmp1_b32 s2, 4')
                    A('s_cbranch_scc1 L_notouch')
                for n in range(8): L += self.touch('Q', n)
                for kind, n in [('K', 0), ('K', 1), ('V', 0), ('K', 2), ('V', 1)]: L += self.touch(kind, n)
                if o.get('throttle'): A('L_notouch:')
        for k, ref in enumerate([('Q', 0), ('Q', 1), ('Q', 2), ('Q', 3), ('K', 0)] + [('Q', n) for n in range(4, o.get('headq', 5))]):
            L += self.issue_tile_linear(ref)
            if k < o.get('throttle', 0):
                if o.get('tgroups'):
                    if k == 0:
                        A('s_bfe_u32 s88, s2, 0x20004')
                        A(f's_mul_i32 s88, s88, {o["tgroups"]}')
                    A(f's_cmp_gt_u32 s88, {k}')
                else:
                    A(f's_bitcmp1_b32 s2, {o.get("tbit", 4)}')
                A(f's_cbranch_scc0 L_deep{k}')
                A('s_waitcnt vmcnt(0)')
                L[-1].kind = 'salu'
                A(f'L_deep{k}:')
        A(f'v_and_b32 v{t0}, 15, v0')
        A(f'v_lshrrev_b32 v{t1}, 4, v0')
        A(f'v_lshrrev_b32 v{t2}, 2, v{t0}')
        A(f'v_and_b32 v{t3}, 1, v{t2}')
        A(f'v_lshrrev_b32 v{t2}, 1, v{t2}')
        A(f'v_lshl_add_u32 v{t2}, v{t3}, 1, v{t2}')
        A(f'v_mov_b32 v{vT+1}, v{t2}')
        A(f'v_and_b32 v{t3}, 3, v{t0}')
        A(f'v_lshl_add_u32 v{t2}, v{t3}, 2, v{t2}')
        A(f'v_mul_u32_u24 v{vKl}, 1040, v{t2}')
        A(f'v_lshl_add_u32 v{vKl}, v{t1}, 6, v{vKl}')
        A(f'v_and_b32 v{t3}, 1, v{t1}')
        A(f'v_lshrrev_b32 v{t2}, 1, v{t1}')
        A(f'v_lshl_add_u32 v{t2}, v{t3}, 1, v{t2}')
        A(f'v_bfe_u32 v{t3}, v0, 2, 2')
        A(f'v_lshl_add_u32 v{t2}, v{t3}, 2, v{t2}')
        A(f'v_mul_u32_u24 v{vVl}, 1040, v{t2}')
        A(f'v_and_b32 v{t3}, 3, v0')
        A(f'v_lshl_add_u32 v{vVl}, v{t3}, 3, v{vVl}')
        A(f'v_and_b32 v{t3}, 3, v{t0}')
        A(f'v_lshl_add_u32 v{t2}, v{vT+1}, 2, v{t3}')
        A(f'v_lshrrev_b32 v{vT+1}, 3, v{t2}')
        A(f'v_lshl_add_u32 v{t3}, v{vT+1}, 2, v{t3}')
        A(f'v_and_b32 v{vT+1}, 1, v{t1}')
        A(f'v_lshrrev_b32 v{vT+2}, 1, v{t1}')
        A(f'v_lshl_add_u32 v{vT+1}, v{vT+1}, 1, v{vT+2}')
        A(f'v_xor_b32 v{t3}, v{t3}, v{vT+1}')
        A(f'v_lshlrev_b32 v{t3}, 4, v{t3}')
        A(f'v_lshl_add_u32 v{t3}, v{t2}, 7, v{t3}')
        A(f'v_lshl_add_u32 v{t3}, v{vT}, 11, v{t3}')
        A(f'v_add_u32 v{vSW[0]}, {STG}, v{t3}')
        A(f'v_xor_b32 v{vSW[1]}, 64, v{vSW[0]}')
        A(f'v_lshrrev_b32 v{t2}, 3, v0')
        A(f'v_and_b32 v{t3}, 7, v0')
        A(f'v_and_b32 v{vT+1}, 3, v{t2}')
        A(f'v_xor_b32 v{vSR[0]}, v{vT+1}, v{t3}')
        A(f'v_lshlrev_b32 v{vSR[0]}, 4, v{vSR[0]}')
        A(f'v_lshl_add_u32 v{vSR[0]}, v{t2}, 7, v{vSR[0]}')
        A(f'v_lshl_add_u32 v{vSR[0]}, v{vT}, 11, v{vSR[0]}')
        A(f'v_add_u32 v{vSR[0]}, {STG}, v{vSR[0]}')
        A(f'v_xor_b32 v{vSR[1]}, 64, v{vSR[0]}')
        A(f'v_add_u32 v{vSR[1]}, 0x400, v{vSR[1]}')
        A(f'v_lshlrev_b32 v{vO[0]}, 9, v{t2}')
        A(f'v_lshl_add_u32 v{vO[0]}, v{t3}, 4, v{vO[0]}')
        A(f'v_add_u32 v{vO[1]}, 0x1000, v{vO[0]}')
        if o.get('direct'):
            A(f'v_lshrrev_b32 v{t2}, 2, v{t0}')
            A(f'v_and_b32 v{t3}, 1, v{t2}')
            A(f'v_lshrrev_b32 v{t2}, 1, v{t2}')
            A(f'v_lshl_add_u32 v{t2}, v{t3}, 1, v{t2}')
            A(f'v_and_b32 v{t3}, 3, v{t0}')
            A(f'v_lshl_add_u32 v{t2}, v{t2}, 2, v{t3}')
            A(f'v_lshlrev_b32 v{vO[0]}, 9, v{t2}')
            A(f'v_and_b32 v{t3}, 1, v{t1}')
            A(f'v_lshrrev_b32 v{t2}, 1, v{t1}')
            A(f'v_lshl_add_u32 v{t2}, v{t3}, 1, v{t2}')
            A(f'v_lshl_add_u32 v{vO[0]}, v{t2}, 4, v{vO[0]}')
        A(f's_mov_b32 s{sC}, 0x3db8aa3b')
        A(f's_mov_b32 s{sThr}, 0x41000000')
        L += self.code_prefetch()
        if o.get('keepwarm'):
            A(f's_lshr_b32 s{sKW}, s2, 3')
            A(f's_lshl_b32 s{sKW}, s{sKW}, 2')
            A(f's_add_u32 s{sKW}, s{sKW}, s{sW}')
            A(f's_and_b32 s{sKW}, s{sKW}, 63')
            A(f's_lshl_b32 s{sKW}, s{sKW}, 10')
            A(f'v_lshlrev_b32 v{vKW}, 4, v0')
        if o.get('tlbwarm'):
            A(f'v_lshlrev_b32 v{vJ}, 2, v0')
            A(f's_add_u32 s84, s{sOffK}, {ITEM_STRIDE}')
            A(f's_add_u32 s85, s{sOO[0]}, {ITEM_STRIDE}')
            junk = SB[1] + 28
            for n, (sr, so) in enumerate([(sQ, 85), (sK, 84), (sV, 84), (sO, sOO[0]), (sO, 85)]):
                A(f'buffer_load_dword v{junk + (n % 4)}, v{vJ}, {srd(sr)}, s{so} offen')
        if o.get('warm'):
            for i in range(16):
                A(f'v_mul_u32_u24 v{PB+i}, {0x3d81 + 37*i}, v0')
                A(f'v_lshl_or_b32 v{PB+i}, v{PB+i}, 16, v{PB+i}')
                A(f'v_and_b32 v{PB+i}, 0xbfffbfff, v{PB+i}')
                A(f'v_or_b32 v{PB+i}, 0x3c003c00, v{PB+i}')
            A(f's_mov_b32 s{sCnt}, {o["warm"]}')
            A('L_warm:')
            for i in range(16):
                A(f'v_mfma_f32_16x16x32_bf16 {vr(OLO+4*i,4)}, {vr(PB+4*(i%4),4)}, {vr(PB+4*((i+1+i//4)%4),4)}, 0')
            A(f's_sub_u32 s{sCnt}, s{sCnt}, 1')
            A(f's_cmp_lg_u32 s{sCnt}, 0')
            A('s_cbranch_scc1 L_warm')
        return L

    def code_prefetch(self, rep=0):
        o = self.o
        npf = o.get('codepf', 0)
        L = []
        A = lambda s: L.append(I(s))
        if not npf or getattr(self, 'pf_done', False): return L
        self.pf_done = True
        t2 = 30
        if rep == 0:
            A('s_getpc_b64 s[64:65]')
            A('L_pc:')
            A('s_and_b32 s65, s65, 0xffff')
            A('s_mov_b32 s66, L_code_end-L_pc')
            A('s_mov_b32 s67, 0x20000')
            if o.get('stagger'):
                A('s_lshr_b32 s68, s2, 5')
                A('s_and_b32 s68, s68, 7')
                A('s_lshl_b32 s68, s68, 3')
                A('s_bfe_u32 s69, s2, 0x10003')
                A('s_lshl_b32 s69, s69, 2')
                A('s_add_u32 s68, s68, s69')
            else:
                A('s_lshr_b32 s68, s2, 3')
                A('s_and_b32 s68, s68, 7')
                A('s_lshl_b32 s68, s68, 2')
            A(f's_add_u32 s68, s68, s{sW}')
            A(f's_mul_i32 s68, s68, {npf*1024*max(1, o.get("stagger", 0))}')
            A(f'v_lshlrev_b32 v{t2}, 4, v0')
        else:
            A(f's_add_u32 s68, s68, {npf*1024}')
        for i in range(npf):
            A(f'buffer_load_dwordx4 {vr(SB[1] + 4 * (i % 8), 4)}, v{t2}, s[64:67], s68 offen offset:{i*1024}')
        return L

    def qk0_full(self):
        G = Gaps(64)
        K0 = ('K0', 0)
        rd = [self.kread(f, f % 4, K0, last=(f == 15)) for f in range(16)]
        q = []
        for ks in range(8):
            for b in (2, 3):
                n = ks * 2 + (b & 1)
                q.append(self.qread(b, ks, vT, ('Q', 4 + n // 4), last=(n % 4 == 3)))
        pre = q[:8] + rd[:4]
        for g in range(64):
            G.mf[g] = self.mf_qk(0, g >> 2, g & 3, (g >> 2) % 4)
            if self.o.get('noqk0') and (g & 3) < 2: G.mf[g] = None
        for f in range(16):
            g = 4 * f + 3
            if f + 4 < 16: G.fixed(g, rd[f + 4])
            if f + 4 < 8:
                G.fixed(g - 2, q[2 * (f + 4)]); G.fixed(g - 1, q[2 * (f + 4) + 1])
            if f + 1 < 16:
                w = regs('v', FB[(f + 1) % 4], 4)
                if f + 1 < 8:
                    for b in (2, 3): w += regs('a', (b * 8 + f + 1) * 4, 4)
                G.sh[g].append(waitlds(w))
        w0 = regs('v', FB[0], 4)
        for b in (2, 3): w0 += regs('a', (b * 8) * 4, 4)
        pre.append(waitlds(w0))
        return pre + G.emit()

    def tile_events(self, ref):
        s, off = self.tile_src(ref)
        d = [self.dma(ref, n) for n in range(4)]
        return [[self.m0set()] + self.wp_adv() + [d[0]], [d[1]], [d[2]], [d[3], I(f's_add_u32 s{off}, s{off}, 0x4000')]]

    @staticmethod
    def times(stream):
        t = 0; last = -100; out = []
        prev_mfma = False
        for ins in stream:
            k = ins.kind
            if k == 'mfma':
                t = max(t, last + 16); last = t
                out.append(t); t += 8; prev_mfma = True
                continue
            out.append(t)
            if k in ('label', 'pseudo', 'dir'): continue
            if k == 'nop': t += 4 * ins.n
            elif k == 'trans' or ins.op.startswith('v_pk_') : t += 8
            elif k in ('salu', 'wait', 'barrier', 'branch', 'smem'): t += 0 if prev_mfma else 4
            elif k == 'dsw': t += 8
            else: t += 4
            prev_mfma = False
        return out

    def inject(self, stream, events):
        tm = self.times(stream)
        pos = []
        lo = 0
        for e_lo, e_hi, hint, ins in events:
            p = max(lo, e_lo)
            if hint is not None:
                while p < len(stream) and tm[p] < hint: p += 1
            while p < len(stream) and p > 0 and stream[p - 1].kind == 'mfma' and stream[p].kind in ('salu', 'wait', 'barrier', 'pseudo'): p += 1
            while p < len(stream) and p > 0 and (('m0', 0) in stream[p - 1].wr or stream[p].meta.get('glued')): p += 1
            if e_hi is not None: p = min(p, e_hi)
            while p > 0 and p < len(stream) and stream[p].meta.get('glued'): p -= 1
            pos.append(p); lo = max(lo, p)
        for k in range(len(pos) - 2, -1, -1): pos[k] = min(pos[k], pos[k + 1])
        for k, ev in enumerate(events): assert pos[k] >= ev[0], ('event cannot be placed', k, pos[k], ev[0], [i.text for i in ev[3]])
        out = []
        k = 0
        for i in range(len(stream) + 1):
            while k < len(events) and pos[k] == i:
                out += events[k][3]; k += 1
            if i < len(stream): out.append(stream[i])
        assert k == len(events)
        return out

    def qk0_half(self, h, pre_reads_q):
        G = Gaps(32)
        K0 = ('K0', 0)
        pre = []
        rd = [self.kread(f, f % 4, K0, last=(h == 1 and f == 15)) for f in range(16)]
        if pre_reads_q:
            q = []
            for ks in range(8):
                for b in (2 * h, 2 * h + 1):
                    n = ks * 2 + (b & 1)
                    q.append(self.qread(b, ks, vT, ('Q', 4 * h + n // 4), last=(n % 4 == 3)))
            pre += q[:8]
        pre += rd[:4]
        for g in range(32):
            f, b = g >> 1, 2 * h + (g & 1)
            G.mf[g] = self.mf_qk(0, f, b, f % 4)
        for f in range(16):
            g = 2 * f + 1
            if f + 4 < 16: G.fixed(g, rd[f + 4])
            if pre_reads_q and f + 4 < 8:
                G.fixed(g - 1, q[2 * (f + 4)]); G.fixed(g, q[2 * (f + 4) + 1])
            if f + 1 < 16:
                w = regs('v', FB[(f + 1) % 4], 4)
                if pre_reads_q and f + 1 < 8:
                    for b in (2 * h, 2 * h + 1): w += regs('a', (b * 8 + f + 1) * 4, 4)
                G.sh[g].append(waitlds(w))
        w0 = regs('v', FB[0], 4)
        if pre_reads_q:
            for b in (2 * h, 2 * h + 1): w0 += regs('a', (b * 8) * 4, 4)
        pre.append(waitlds(w0))
        return pre + G.emit()

    def init_softmax(self):
        L = []
        A = lambda s, m=None: L.append(I(s, m))
        tt = SB[1]
        for b in range(4):
            s = Sreg(0, b); t = tt + 2 * b
            A(f'v_max3_f32 v{t}, v{s}, v{s+1}, v{s+2}')
            A(f'v_max3_f32 v{t}, v{t}, v{s+3}, v{s+4}')
            A(f'v_max3_f32 v{t}, v{t}, v{s+5}, v{s+6}')
            A(f'v_max_f32 v{t}, v{t}, v{s+7}')
            A(f'v_mov_b32 v{t+1}, v{t}')
        L += self.xlane('v_max_f32', [tt + 2 * b for b in range(4)])
        for b in range(4):
            t = tt + 2 * b
            A(f'v_mul_f32 v{vNM[b]}, s{sC}, v{t}')
            A(f'v_sub_f32 v{vNM[b]}, 0, v{vNM[b]}')
            A(f'v_mov_b32 v{vL[b]}, 0')
        for b in range(4):
            for i in range(8):
                r = Sreg(0, b) + i
                A(f'v_fma_f32 v{r}, v{r}, s{sC}, v{vNM[b]}')
        return L

    def xlane(self, op, ts):
        L = []
        A = lambda s: L.append(I(s))
        A('s_nop 1')
        for t in ts: A(f'v_permlane16_swap_b32 v{t}, v{t+1}')
        for t in ts: A(f'{op} v{t}, v{t}, v{t+1}')
        for t in ts: A(f'v_mov_b32 v{t+1}, v{t}')
        A('s_nop 1')
        for t in ts: A(f'v_permlane32_swap_b32 v{t}, v{t+1}')
        for t in ts: A(f'{op} v{t}, v{t}, v{t+1}')
        return L

    def convert_direct(self, mod=''):
        L = []
        A = lambda s, m=None: L.append(I(s, m))
        iv = SB[1]
        for b in range(4):
            A(f'v_mov_b32 v{iv+2*b}, v{vL[b]}')
            A(f'v_mov_b32 v{iv+2*b+1}, v{vL[b]}')
        L += self.xlane('v_add_f32', [iv + 2 * b for b in range(4)])
        for b in range(4): A(f'v_rcp_f32 v{iv+2*b}, v{iv+2*b}')
        A('s_nop 1')
        tA = SB[1] + 8
        stores = []; marks = []
        for ci, (b, dq) in enumerate([(b, dq) for dq in (0, 2, 1, 3) for b in range(4)]):
            srcs = []
            for d in range(4):
                f, r = Obase(4 * dq + d, b)
                if f == 'a':
                    for i in range(4): A(f'v_accvgpr_read_b32 v{tA+4*d+i}, a{r+i}')
                    r = tA + 4 * d
                srcs.append(r)
            for d in range(4):
                r = srcs[d]
                A(f'v_pk_mul_f32 {vr(r,2)}, {vr(r,2)}, {vr(iv+2*b,2)} op_sel_hi:[1,0]')
                A(f'v_pk_mul_f32 {vr(r+2,2)}, {vr(r+2,2)}, {vr(iv+2*b,2)} op_sel_hi:[1,0]')
            dst = []
            for m in range(2):
                d16 = 4 * (dq & 1) + 2 * m + (dq >> 1)
                dst.append((d16, Obase(d16, b)[1]))
            for m in range(2):
                p = dst[m][1]
                ra, rb = srcs[2 * m], srcs[2 * m + 1]
                A(f'v_cvt_pk_bf16_f32 v{p}, v{ra}, v{ra+1}')
                A(f'v_cvt_pk_bf16_f32 v{p+1}, v{ra+2}, v{ra+3}')
                A(f'v_cvt_pk_bf16_f32 v{p+2}, v{rb}, v{rb+1}')
                A(f'v_cvt_pk_bf16_f32 v{p+3}, v{rb+2}, v{rb+3}')
            p0, p1 = dst[0][1], dst[1][1]
            A(f'v_permlane16_swap_b32 v{p0}, v{p0+2}')
            A(f'v_permlane16_swap_b32 v{p0+1}, v{p0+3}')
            A('s_nop 0')
            A(f'v_permlane16_swap_b32 v{p1}, v{p1+2}')
            A(f'v_permlane16_swap_b32 v{p1+1}, v{p1+3}')
            marks.append(len(L))
            for m in range(2):
                d16, p = dst[m]
                stores.append((ci, 96 + 4 * d16 + b,
                               [I(f'buffer_store_dwordx4 {vr(p,4)}, v{vO[0]}, {srd(sO)}, s{sOO[b]} offen offset:{dq*128+m*64}{mod}')]))
        return L, marks, stores

    def convert(self, mod='', npark=0):
        if self.o.get('direct'): return self.convert_direct(mod)
        L = []
        A = lambda s, m=None: L.append(I(s, m))
        iv = SB[1]
        for b in range(4):
            A(f'v_mov_b32 v{iv+2*b}, v{vL[b]}')
            A(f'v_mov_b32 v{iv+2*b+1}, v{vL[b]}')
        L += self.xlane('v_add_f32', [iv + 2 * b for b in range(4)])
        for b in range(4): A(f'v_rcp_f32 v{iv+2*b}, v{iv+2*b}')
        A('s_nop 1')
        tA = SB[1] + 8
        pk = [SB[1] + 24, FB[0], FB[2]]
        chunks = [(b, dq) for dq in (2, 3, 0, 1) for b in range(4)]
        stores = []
        marks = []
        self.cv_split = None
        self.parked = []
        pend = []
        for ci, (b, dq) in enumerate(chunks):
            parked = ci >= 16 - npark
            if ci == 16 - npark:
                L += pend; pend = []
                marks.append(len(L))
                self.cv_split = len(L)
            p = pk[ci % 3]
            V = []
            srcs = []
            for d in range(4):
                f, r = Obase(4 * dq + d, b)
                if f == 'a':
                    for i in range(4): V.append(I(f'v_accvgpr_read_b32 v{tA+4*d+i}, a{r+i}'))
                    r = tA + 4 * d
                srcs.append(r)
            for d in range(4):
                r = srcs[d]
                V.append(I(f'v_pk_mul_f32 {vr(r,2)}, {vr(r,2)}, {vr(iv+2*b,2)} op_sel_hi:[1,0]'))
                V.append(I(f'v_pk_mul_f32 {vr(r+2,2)}, {vr(r+2,2)}, {vr(iv+2*b,2)} op_sel_hi:[1,0]'))
            for d in range(4):
                r = srcs[d]
                V.append(I(f'v_cvt_pk_bf16_f32 v{p+2*d}, v{r}, v{r+1}'))
                V.append(I(f'v_cvt_pk_bf16_f32 v{p+2*d+1}, v{r+2}, v{r+3}'))
            n = len(V)
            for k, op in enumerate(pend):
                V.insert(min(len(V), (k + 1) * n // (len(pend) + 1) + k), op)
            L += V
            if pend and not parked: marks.append(len(L))
            sw = [I(f'v_permlane16_swap_b32 v{p+4*m+i}, v{p+4*m+2+i}') for m in range(2) for i in range(2)]
            L += sw
            if parked:
                cp = ci - (16 - npark)
                pend = [I(f'ds_write_b128 v{vPK[m]}, {vr(p+4*m,4)} offset:{cp*2048}') for m in range(2)]
                for k in range(2):
                    self.parked.append((cp, k, b, dq))
                continue
            pend = [I(f'ds_write_b128 v{vSW[m]}, {vr(p+4*m,4)}') for m in range(2)]
            if npark and self.o.get('stgpark') and ci == 15 - npark:
                self.stg_parked = [(k, b, dq) for k in range(2)]
                continue
            for k in range(2):
                kk = 2 * (ci // 4) + k
                ra = 128 + (kk * 4 + b) * 4
                pend.append(I(f'ds_read_b128 {ar(ra,4)}, v{vSR[k]}'))
                stores.append((ci, 96 + 4 * kk + b, [waitlds(regs('a', ra, 4)),
                               I(f'buffer_store_dwordx4 {ar(ra,4)}, v{vO[k]}, {srd(sO)}, s{sOO[b]} offen offset:{dq*128}{mod}')]))
        L += pend
        marks.append(len(L))
        return L, marks, stores

    def rare(self, buf):
        L = []
        A = lambda s, m=None: L.append(I(s, m))
        A(f'L_rarefn_{buf}:')
        A('s_nop 15')
        tt = PB
        for b in range(4):
            s = Sreg(buf, b); t = tt + 2 * b
            A(f'v_max3_f32 v{t}, v{s}, v{s+1}, v{s+2}')
            A(f'v_max3_f32 v{t}, v{t}, v{s+3}, v{s+4}')
            A(f'v_max3_f32 v{t}, v{t}, v{s+5}, v{s+6}')
            A(f'v_max_f32 v{t}, v{t}, v{s+7}')
            A(f'v_mov_b32 v{t+1}, v{t}')
        L += self.xlane('v_max_f32', [tt + 2 * b for b in range(4)])
        for b in range(4):
            t = tt + 2 * b
            A(f'v_max_f32 v{t}, 0, v{t}')
            A(f'v_sub_f32 v{vNM[b]}, v{vNM[b]}, v{t}')
            A(f'v_sub_f32 v{t+1}, 0, v{t}')
            A(f'v_exp_f32 v{t+1}, v{t+1}')
            for i in range(8):
                A(f'v_sub_f32 v{Sreg(buf,b)+i}, v{Sreg(buf,b)+i}, v{t}')
            A(f'v_mul_f32 v{vL[b]}, v{vL[b]}, v{t+1}')
        A(f's_branch L_rescale')
        return L

    def rescale(self):
        L = []
        A = lambda s, m=None: L.append(I(s, m))
        A('L_rescale:')
        tt = PB
        for d16 in range(16):
            for b in range(4):
                f, r = Obase(d16, b)
                fac = tt + 2 * b + 1
                if f == 'v':
                    for i in range(4): A(f'v_mul_f32 v{r+i}, v{r+i}, v{fac}')
                else:
                    for i in range(4): A(f'v_accvgpr_read_b32 v{tt+8+i}, a{r+i}')
                    for i in range(4): A(f'v_mul_f32 v{tt+8+i}, v{tt+8+i}, v{fac}')
                    for i in range(4): A(f'v_accvgpr_write_b32 a{r+i}, v{tt+8+i}')
        A('s_nop 1')
        A(f's_setpc_b64 s[{sRet}:{sRet+1}]')
        return L

    def second_half(self, full=False):
        L = []
        A = lambda s, m=None: L.append(I(s, m))
        L += self.stamp()
        L.append(waitvm([('Q', 4), ('Q', 5), ('Q', 6), ('Q', 7)]))
        A('s_barrier')
        A(f's_add_u32 s{sT0}, s{sRP}, s{sWT}')
        A(f's_add_u32 s{sT0}, s{sT0}, s{sTT}')
        A(f's_sub_u32 s{sT1}, s{sT0}, s{sRING}')
        A(f's_min_u32 s{sT0}, s{sT0}, s{sT1}')
        A(f'v_add_u32 v{vT}, s{sT0}, v{vKl}')
        if full: A(f'v_add_u32 v{vK}, s{sRP}, v{vKl}')
        L += self.ptr_adv(sRP, sTr, 5 * T)
        L += self.qk0_full() if full else self.qk0_half(1, True)
        L += self.stamp()
        L.append(waitlds(sum((regs('v', FB[i], 4) for i in range(4)), []) + regs('a', 64, 64)))
        L.append(waitvm([('K', 1), ('V', 0)]))
        A('s_barrier')
        e2 = len(L)
        A(f'v_add_u32 v{vK}, s{sRP}, v{vKl}')
        L += self.rp_adv()
        L += [self.kread(f, f % 4, ('K', 1)) for f in range(4)]
        L += self.init_softmax()
        L.append(waitlds(regs('v', FB[0], 4) + (regs('v', FB[1], 4) if self.o.get('chain2') else [])))
        return L, e2

    def first_half(self):
        L = []
        A = lambda s, m=None: L.append(I(s, m))
        A(f'v_add_u32 v{vK}, s{sRP}, v{vKl}')
        L += self.qk0_half(0, False)
        return L

    @staticmethod
    def mfma_index(stream, start, n):
        c = -1
        for i in range(start, len(stream)):
            if stream[i].kind == 'mfma':
                c += 1
                if c == n: return i
        raise ValueError

    def item2_blocks(self, B, cert):
        o = self.o
        B['s1c'] = self.step('s1c', 1, True, True, False, [('K', 4), ('V', 3), ('K', 5)], cert, pre=[I('L_s1c:')])
        B['s2c'] = self.step('s2c', 0, True, True, False, [('V', 3), ('K', 5), ('V', 4)], cert, post=[I(f's_mov_b32 s{sCnt}, 4')])
        B['s3c'] = self.step('s3c', 1, True, True, False, [('K', 5), ('V', 4)], cert, pre=[I('L_loop2:')])
        B['s4c'] = self.step('s4c', 0, True, True, False, [('K', 5), ('V', 4)], cert,
                             post=[I(f's_sub_u32 s{sCnt}, s{sCnt}, 1'), I(f's_cmp_lg_u32 s{sCnt}, 0'), I('s_cbranch_scc1 L_loop2')] +
                                  ([I(f's_cmp_eq_u32 s{sItem}, 0'), I('s_cbranch_scc1 L_s11')] if o.get('d3both') else []))
        B['s11c'] = self.step('s11c', 1, True, True, False, [('V', 4)], cert)
        B['s12c'] = self.step('s12c', 0, True, True, False, [], cert)
        B['s13c'] = self.step('s13c', 1, True, True, False, [], cert)
        B['s14c'] = self.step('s14c', 0, True, False, False, [], [('V', 1)])
        B['s15c'] = self.step('s15c', 1, False, False, False, [], [])

    def paced(self, tm, items, t0):
        o = self.o
        maxfl = o.get('maxfl', 12)
        lat = {'d': o.get('latd', 2200), 's': o.get('lats', 800)}
        gap = {'d': o.get('vgap', 70), 's': o.get('sgap', 145)}
        ev = []; hist = []; t = t0
        for kind, ins, lo, hi in items:
            t = max(t, tm[min(lo, len(tm) - 1)])
            if len(hist) >= maxfl: t = max(t, sorted(hist)[-maxfl])
            ev.append((lo, hi, t, ins))
            hist.append(t + lat[kind])
            t += gap[kind]
        return ev

    def build(self):
        o = self.o
        B = {}
        B['setup'] = self.setup()
        cert = [('K', 2), ('V', 1)]
        iss = [('K', 4), ('V', 3)]
        gbar = o.get('gbar', 70)
        H = self.stamp()
        H.append(waitvm([('Q', 0), ('Q', 1), ('Q', 2), ('Q', 3)]))
        H.append(I('s_barrier'))
        H += self.stamp()
        hq = len(H)
        H.append(I(f'v_add_u32 v{vT}, s{sWT}, v{vKl}'))
        for b in range(2):
            for ks in range(8):
                n = b * 8 + ks
                H.append(self.qread(b, ks, vT, ('Q', n // 4), last=(n % 4 == 3)))
        H.append(waitvm([('K0', 0)]))
        H.append(I('s_waitcnt lgkmcnt(0)'))
        H.append(I('s_barrier'))
        if o.get('touch') == 1:
            for kind, rel in [('K', 2), ('V', 2), ('K', 3), ('V', 3), ('K', 4), ('V', 4)]: H += self.touch(kind, rel)
        h0 = len(H)
        H += self.first_half()
        h1 = len(H)
        sec, e2 = self.second_half()
        w = [h1 + i for i, ins in enumerate(sec) if ins.op == 'PSEUDO_WAITVM']
        e1b = h1 + next(i for i, ins in enumerate(sec) if ins.kind == 'barrier') + 1
        e2 += len(H)
        H += sec
        s0 = len(H)
        self.tw = 0
        def tkv():
            if not o.get('touch'): return []
            if o['touch'] == 2:
                self.tw = (self.tw + 1) % 4
                return [self.tgroup(self.tw, [('K', sTK, 0), ('V', sTV, 0)])]
            return [self.touch('K', sreg=sTK), self.touch('V', sreg=sTV)]
        def tq(rels):
            if not o.get('touch'): return []
            if o['touch'] == 2:
                return [self.tgroup(2 + (n & 1), [('Q', None, r * 0x4000), ('Q', None, r * 0x4000 + 0x2000)]) for n, r in enumerate(rels)]
            return [self.touch('Q', r) for r in rels]
        H += self.step('s0a', 0, True, True, True, iss, cert,
                       post=([I('s_branch L_s1c')] if o.get('d3both') else [I(f's_mov_b32 s{sCnt}, 5')]), touches=tkv())
        gb0 = self.mfma_index(H, s0, gbar - 4)
        items = []
        nq = o.get('headq', 5)
        for n in range(nq, 8): items += [('d', e, hq, w[0]) for e in self.tile_events(('Q', n))]
        for ref in [('K', 1), ('V', 0)]: items += [('d', e, h0, w[1]) for e in self.tile_events(ref)]
        for ref in [('K', 2), ('V', 1)]: items += [('d', e, e1b, gb0) for e in self.tile_events(ref)]
        for ref in [('K', 3), ('V', 2)]: items += [('d', e, e2, gb0) for e in self.tile_events(ref)]
        tm = self.times(H)
        ev = []
        t = tm[hq]
        hg = o.get('headgap', [40, 60, 70, 130])
        for n, (kind, ins, lo, hi) in enumerate(items):
            grp = 0 if hi == w[0] else (1 if hi == w[1] else (2 if lo == e1b else 3))
            t = max(t, tm[lo]); ev.append((lo, hi, t, ins)); t += hg[grp]
        pf = self.code_prefetch()
        B['head'] = self.inject(H, ev)
        JUMP = ITEM_STRIDE - 16 * 16384
        jk = [I(f's_cmp_eq_u32 s{sCnt}, 1'), I(f's_cselect_b32 s{sTt}, {JUMP}, 0'), I(f's_add_u32 s{sTK}, s{sTK}, s{sTt}')] if o.get('touch') else []
        wb = []
        if o.get('wbl2'):
            wb = [I(f's_cmp_eq_u32 s{sCnt}, s{sWb}'), I('s_cbranch_scc0 L_nowb'), I('buffer_wbl2 sc1'), I('L_nowb:')]
        B['s1'] = self.step('s1', 1, True, True, False, iss, cert, pre=[I('L_loop:')], touches=tkv(), post=wb)
        B['s2'] = self.step('s2', 0, True, True, False, iss, cert, touches=tkv(), pre=jk,
                            post=[I(f's_sub_u32 s{sCnt}, s{sCnt}, 1'), I(f's_cmp_lg_u32 s{sCnt}, 0'), I('s_cbranch_scc1 L_loop')])
        sep2 = bool(o.get('sep2'))
        def nxt(off, srd_, tiles):
            if sep2: return [I(f's_add_u32 s{off}, s{off}, {ITEM_STRIDE - tiles*16384}')]
            return [I(f's_add_u32 s{off}, s{off}, {ITEM_STRIDE - tiles*16384}'),
                    I(f's_cmp_eq_u32 s{sItem}, 1'),
                    I(f's_cselect_b32 s{srd_+2}, 0, s{srd_+2}'),
                    I(f's_cselect_b32 s{off}, 0, s{off}')]
        B['s11'] = self.step('s11', 1, True, True, False, [('Qn', 0), ('Qn', 1)] if o.get('d3both') else ([('K', 4), ('V', 3), ('Qn', 0)] if o.get('bal33') else [('K', 4), ('V', 3), ('Qn', 0), ('Qn', 1)]), cert,
                             pre=([I('L_s11:')] if o.get('d3both') else []) + nxt(sOffQ, sQ, 8) + ([I(f's_add_u32 s{sTV}, s{sTV}, {JUMP}')] if o.get('touch') else []), touches=tkv())
        B['s12'] = self.step('s12', 0, True, True, False, ([('Qn', 1), ('Qn', 2), ('Qn', 3)] if (o.get('bal33') and not o.get('d3both')) else [('Qn', 2), ('Qn', 3)]), cert, pre=nxt(sOffK, sK, 16),
                             touches=tq([2, 3]))
        B['s13'] = self.step('s13', 1, True, True, False, [('V', 2), ('Kn', 0)], cert,
                             touches=tq([2, 3]))
        B['s14'] = self.step('s14', 0, True, False, False, [('Qn', 4), ('Qn', 5)], [('Qn', 0), ('Qn', 1), ('Qn', 2), ('Qn', 3)],
                             pre=nxt(sOffV, sV, 16), qprefetch=True, touches=tkv())
        S15 = self.step('s15', 1, False, False, False, [], [('V', 0), ('Kn', 0)], touches=tkv(),
                        post=([] if sep2 else [I(f's_cmp_eq_u32 s{sItem}, 1'), I('s_cbranch_scc1 L_tail')]))
        b15 = next(i for i, ins in enumerate(S15) if ins.kind == 'barrier') + 1
        tm = self.times(S15)
        items = []
        n15 = o.get('n15', 3)
        nexts = [('Qn', 6), ('Qn', 7), ('Kn', 1), ('Vn', 0), ('Kn', 2)]
        endp = len(S15) - 2
        for ref in nexts[:n15]: items += [('d', e, b15, endp) for e in self.tile_events(ref)]
        span = tm[endp] - tm[b15]
        ev = [(lo, hi, tm[b15] + n * span // (len(items) + 1), ins) for n, (k_, ins, lo, hi) in enumerate(items)]
        B['s15'] = self.inject(S15, ev)
        X = self.stamp()
        X += [I(f's_mov_b32 s{sItem}, 1'), I('s_nop 7')]
        if o.get('wbl2'):
            X += [I(f's_lshl_b32 s{sTt}, s{sW}, 8'), I(f's_add_u32 s{sTt}, s{sTt}, s2'), I(f's_cmp_lt_u32 s{sTt}, 8'),
                  I(f's_cselect_b32 s{sWb}, {o["wbl2"]}, 0xffff')]
        for grp in tkv() + tkv(): X += grp
        x0 = len(X)
        if not o.get('cvfirst'): X += self.first_half()
        X += self.stamp()
        c0 = len(X)
        npark = o.get('park', 0)
        cv, marks, stores = self.convert(mod=o.get('stmod1', ''), npark=npark)
        cv2 = []
        if npark:
            cv, cv2 = cv[:self.cv_split], cv[self.cv_split:]
        parked = list(self.parked)
        X += cv
        x1 = len(X)
        sec, e2 = self.second_half(full=bool(o.get('cvfirst')))
        w = [x1 + i for i, ins in enumerate(sec) if ins.op == 'PSEUDO_WAITVM']
        e1b = x1 + next(i for i, ins in enumerate(sec) if ins.kind == 'barrier') + 1
        if npark:
            pk = [I(f's_add_u32 s{sT0}, s{sRP}, {(4 if o.get("parkearly") else 6)*T}'), I(f's_sub_u32 s{sT1}, s{sT0}, s{sRING}'), I(f's_min_u32 s{sT0}, s{sT0}, s{sT1}'),
                  I(f's_add_u32 s{sPark}, s{sT0}, s{sTT}'), I(f's_sub_u32 s{sT1}, s{sPark}, s{sRING}'), I(f's_min_u32 s{sPark}, s{sPark}, s{sT1}'),
                  I(f's_cmp_lt_u32 s{sW}, 2'), I(f's_cselect_b32 s{sPark}, s{sT0}, s{sPark}'),
                  I(f's_and_b32 s{sT0}, s{sW}, 1'), I(f's_lshl_b32 s{sT0}, s{sT0}, 13'), I(f's_add_u32 s{sPark}, s{sPark}, s{sT0}'),
                  I(f's_lshl_b32 s{sT0}, s{sW}, 11'), I(f's_sub_u32 s{sPark}, s{sPark}, s{sT0}'), I(f's_sub_u32 s{sPark}, s{sPark}, {STG}'),
                  I(f'v_add_u32 v{vPK[0]}, s{sPark}, v{vSW[0]}'), I(f'v_add_u32 v{vPK[1]}, s{sPark}, v{vSW[1]}')]
            for ins in pk[1:]: ins.meta['glued'] = True
            after = [I(f'v_add_u32 v{vPK[0]}, s{sPark}, v{vSR[0]}'), I(f'v_add_u32 v{vPK[1]}, s{sPark}, v{vSR[1]}')]
            sec = sec[:e2] + pk + cv2 + after + sec[e2:]
            e2 += len(pk)
        e2 += x1
        X += sec
        s0 = len(X)
        oo_adv = [I(f's_add_u32 s{sOO[b]}, s{sOO[b]}, {ITEM_STRIDE}') for b in range(4)]
        if npark and o.get('parkearly'):
            assert sep2
            X += self.step('s0b', 0, True, True, True, iss, cert)
            mod1 = o.get('stmod1', '')
            plan = (('s1b', 1, parked[:5], [('K', 4), ('V', 3)], [], True, 120, o.get('draingap', 400)),
                    ('s2b', 0, parked[5:], [('K', 4), ('V', 3), ('K', 5), ('V', 4)], oo_adv + [I(f's_mov_b32 s{sCnt}, 4'), I('s_branch L_loop2')], False, 58, 300))
            cnt = 0
            for nm, cur_, pcs, iss_, post_, rs, limg, gap_ in plan:
                S_ = self.step(nm, cur_, True, True, False, iss_, cert, post=post_, rpskip=rs)
                ev_ = []
                t_ = 60
                lim = self.mfma_index(S_, 0, limg)
                for (cp, k, b, dq) in pcs:
                    rd = I(f'ds_read_b128 {vr(vPT,4)}, v{vPK[k]} offset:{cp*2048}', {'tile': ('P', cnt // 4), 'last': cnt % 4 == 3})
                    stq = [waitlds(regs('v', vPT, 4)), I(f'buffer_store_dwordx4 {vr(vPT,4)}, v{vO[k]}, {srd(sO)}, s{sOO[b]} offen offset:{dq*128}{mod1}')]
                    ev_.append((0, lim, t_, [rd])); ev_.append((0, self.mfma_index(S_, 0, 124), t_ + 200, stq))
                    t_ += gap_; cnt += 1
                B[nm] = self.inject(S_, ev_)
        elif npark:
            X += self.step('s0b', 0, True, True, True, iss, cert, touches=tkv(), wpskip=True)
            mod1 = o.get('stmod1', '')
            endp = [I(f's_mov_b32 s{sCnt}, 4'), I('s_branch L_loop')] if not sep2 else []
            for nm, cur_, pcs, post_, rs in (('s1b', 1, parked[:4], [], False),
                                             ('s2b', 0, parked[4:], ([] if o.get('stgpark') else oo_adv) + endp, True)):
                S_ = self.step(nm, cur_, True, True, False, iss, cert, post=post_, rpskip=rs)
                tm_ = self.times(S_)
                ev_ = []
                t_ = o.get('drain0', 150)
                lim = self.mfma_index(S_, 0, 120)
                for n_, (cp, k, b, dq) in enumerate(pcs):
                    rd = I(f'ds_read_b128 {vr(vPT,4)}, v{vPK[k]} offset:{cp*2048}', {'tile': ('P', 0 if nm == 's1b' else 1), 'last': n_ == len(pcs) - 1})
                    stq = [waitlds(regs('v', vPT, 4)), I(f'buffer_store_dwordx4 {vr(vPT,4)}, v{vO[k]}, {srd(sO)}, s{sOO[b]} offen offset:{dq*128}{mod1}')]
                    ev_.append((0, lim, t_, [rd])); ev_.append((0, lim, t_ + 220, stq))
                    t_ += o.get('draingap', 440)
                B[nm] = self.inject(S_, ev_)
            if sep2:
                S3 = self.step('s3b', 1, True, True, False, [('K', 4), ('V', 3), ('K', 5)], cert, post=(oo_adv if o.get('stgpark') else []))
                if o.get('stgpark'):
                    ev_ = []; t_ = 150
                    lim = self.mfma_index(S3, 0, 120)
                    for (k, b, dq) in self.stg_parked:
                        rd = I(f'ds_read_b128 {vr(vPT,4)}, v{vSR[k]}')
                        stq = [waitlds(regs('v', vPT, 4)), I(f'buffer_store_dwordx4 {vr(vPT,4)}, v{vO[k]}, {srd(sO)}, s{sOO[b]} offen offset:{dq*128}{mod1}')]
                        ev_.append((0, lim, t_, [rd])); ev_.append((0, lim, t_ + 220, stq)); t_ += 500
                    S3 = self.inject(S3, ev_)
                B['s3b'] = S3
                B['s4b'] = self.step('s4b', 0, True, True, False, [('V', 3), ('K', 5), ('V', 4)], cert,
                                     post=[I(f's_mov_b32 s{sCnt}, 3'), I('s_branch L_loop2')])
        if sep2 and npark:
            self.item2_blocks(B, cert)
        elif sep2:
            X += self.step('s0b', 0, True, True, True, iss, cert, post=oo_adv)
            self.item2_blocks(B, cert)
        elif not npark:
            X += self.step('s0b', 0, True, True, True, iss, cert, touches=tkv(),
                           post=oo_adv + [I(f's_mov_b32 s{sCnt}, 5'), I('s_branch L_loop')])
        tm = self.times(X)
        gb0 = self.mfma_index(X, s0, gbar - 4)
        conv = {'Qn': 'Q', 'Kn': 'K', 'Vn': 'V'}
        items = []
        for ref in nexts[n15:]:
            r = (conv[ref[0]], ref[1])
            items += [('d', e, x0, w[0] if r[0] == 'Q' else (w[1] if r in (('K', 1), ('V', 0)) else gb0)) for e in self.tile_events(r)]
        if o.get('dropst'): stores = stores[:32 - o['dropst']]
        lagc = o.get('stlag', 1)
        st = [('s', ins, (c0 + marks[ci + lagc]) if ci + lagc < len(marks) else x1, self.mfma_index(X, s0, dl - 2)) for ci, dl, ins in stores]
        v1 = [('d', e, e1b, gb0) for e in self.tile_events(('V', 1))]
        k3 = [('d', e, e2, gb0) for ref in [('K', 3), ('V', 2)] for e in self.tile_events(ref)]
        if npark and o.get('parkearly'):
            skip = [I('s_nop 0', {'reserve': ('P', 0)}), I('s_nop 0', {'reserve': ('P', 1)})] + self.ptr_adv(sWP, sTw, 2 * T)
            k3[0] = (k3[0][0], skip + k3[0][1], k3[0][2], k3[0][3])
        sgap = o.get('sgap', 145)
        merged = []
        t = tm[st[0][2]]
        pend = [(tm[e1b], v1), (tm[e2], k3)]
        for it in st:
            while pend and t >= pend[0][0]:
                merged += pend.pop(0)[1]
            merged.append(it)
            t = max(t, tm[it[2]]) + sgap
        for _, g in pend: merged += g
        evs = self.paced(tm, items + merged, tm[x0])
        if o.get('tstamps'):
            evs = [(lo, hi, t_, ins + self.stamp(True)) for lo, hi, t_, ins in evs]
            X = self.stamp(True) + X + self.stamp(True)
            evs = [(lo + len(self.stamp(True)), hi + len(self.stamp(True)), t_, ins) for lo, hi, t_, ins in evs]
            self.evkinds = [k for k, _, _, _ in items + merged]
            print('event kinds:', ''.join(self.evkinds))
        B['trans'] = self.inject(X, evs)
        fin = []
        if o.get('stamps'):
            fin = ([I(f'v_mov_b32 v124, v{o["streg"]}'), I('v_mov_b32 v127, 1')] if o.get('streg') else []) + [I('s_memrealtime s[60:61]'), I('s_waitcnt lgkmcnt(0)'),
                   I('s_mov_b32 m0, s54'), I('s_nop 0'), I('v_writelane_b32 v127, s52, m0'),
                   I('v_writelane_b32 v127, s58, 62'), I('v_writelane_b32 v127, s60, 63'),
                   I('s_mov_b32 s64, s56'), I('s_and_b32 s65, s57, 0xffff'), I('s_mov_b32 s66, 0x1000000'), I('s_mov_b32 s67, 0x20000'),
                   I('s_lshl_b32 s68, s2, 2'), I(f's_add_u32 s68, s68, s{sW}'), I('s_lshl_b32 s68, s68, 8'),
                   I('v_lshlrev_b32 v126, 2, v0'),
                   I('buffer_store_dword v127, v126, s[64:67], s68 offen'), I('s_waitcnt vmcnt(0)')]
            if o.get('stamps') == 3:
                fin += [I('v_writelane_b32 v124, s74, m0'), I('s_add_u32 s68, s68, 0x40000'),
                        I('buffer_store_dword v124, v126, s[64:67], s68 offen'), I('s_waitcnt vmcnt(0)')]
        if o.get('dbgout'):
            lanes = o['dbgout']
            fin += [I('s_load_dwordx2 s[70:71], s[0:1], 32'), I('s_waitcnt lgkmcnt(0)'),
                    I('s_mov_b32 s64, s70'), I('s_and_b32 s65, s71, 0xffff'), I('s_mov_b32 s66, 256'),
                    I('v_mov_b32 v125, 0'), I('v_readlane_b32 s72, v124, 0'), I('s_nop 3')]
            for n, lane in enumerate(lanes):
                fin += [I(f'v_readlane_b32 s73, v124, {lane}'), I('s_nop 3'), I('s_sub_u32 s73, s73, s72'), I('s_nop 3'), I(f'v_writelane_b32 v125, s73, {n}')]
            fin += [I('s_and_b32 s68, s2, 0xef'), I(f's_add_u32 s68, s68, s{sW}'), I('s_cmp_eq_u32 s68, 0'), I('s_cbranch_scc0 L_exit'),
                    I('s_lshr_b32 s68, s2, 4'), I('s_lshl_b32 s68, s68, 5'),
                    I('v_cmp_gt_u32 vcc, 8, v0'), I('s_and_saveexec_b64 s[84:85], vcc'),
                    I('buffer_store_dword v125, v126, s[64:67], s68 offen'), I('s_waitcnt vmcnt(0)')]
        if o.get('spin'):
            fin += [I('s_memrealtime s[60:61]'), I('s_waitcnt lgkmcnt(0)'), I('s_sub_u32 s62, s60, s58')]
            if o['spin'] == 'fixed': fin += [I('s_mov_b32 s62, 30000')]
            else: fin += [I('s_mul_i32 s62, s62, 5')]
            fin += [I('L_spin:'), I('s_memrealtime s[60:61]'), I('s_waitcnt lgkmcnt(0)'), I('s_sub_u32 s63, s60, s58'),
                    I('s_cmp_lt_u32 s63, s62'), I('s_cbranch_scc1 L_spin')]
        cv, marks, stores = self.convert(mod=o.get('stmod', ''))
        ev = [(marks[ci + o.get('stlag', 1)] if ci + o.get('stlag', 1) < len(marks) else len(cv), None, None, ins) for ci, dl, ins in stores]
        cv = self.inject(cv, ev)
        B['tail'] = [I('L_tail:')] + self.stamp() + [I('s_nop 7')] + cv + self.stamp() + [I('s_waitcnt vmcnt(0)')] + self.stamp() + fin + [I('L_exit:'), I('s_endpgm')]
        self.B = B
        order = ['setup', 'head'] + ([] if o.get('d3both') else ['s1', 's2']) + ['s11', 's12', 's13', 's14', 's15', 'trans'] + (['s1b', 's2b'] if o.get('park') else []) + (['s3b', 's4b'] if (o.get('park') and o.get('sep2') and not o.get('parkearly')) else []) + \
                (['s1c', 's2c', 's3c', 's4c', 's11c', 's12c', 's13c', 's14c', 's15c'] if o.get('sep2') else []) + ['tail']
        def ctx(item, j, name):
            def tile(ref):
                k, n = ref
                if k == 'Qn': return (item + 1, 'Q', n)
                if k == 'Kn': return (item + 1, 'K', n)
                if k == 'Vn': return (item + 1, 'V', n)
                if k == 'K0': return (item, 'K', 0)
                if k == 'P': return (item, 'P', n)
                if k == 'Q': return (item, 'Q', n)
                return (item, k, j + n)
            return {'tile': tile, 'name': f'{name}@item{item},j{j}', 'dummy': lambda t: t[0] >= 2}
        trace = [(B['setup'], ctx(0, 0, 'setup')), (B['head'], ctx(0, 0, 'head'))]
        for item in range(2):
            seq = []
            if o.get('sep2') and (item == 1 or o.get('d3both')):
                if item == 1 and o.get('park') and o.get('parkearly'):
                    seq += [('s1b', 1), ('s2b', 2)]
                    for it in range(4): seq += [('s3c', 3 + 2 * it), ('s4c', 4 + 2 * it)]
                elif item == 1 and o.get('park'):
                    seq += [('s1b', 1), ('s2b', 2), ('s3b', 3), ('s4b', 4)]
                    for it in range(1, 4): seq += [('s3c', 3 + 2 * it), ('s4c', 4 + 2 * it)]
                else:
                    seq += [('s1c', 1), ('s2c', 2)]
                    for it in range(4): seq += [('s3c', 3 + 2 * it), ('s4c', 4 + 2 * it)]
                if item == 1: seq += [('s11c', 11), ('s12c', 12), ('s13c', 13), ('s14c', 14), ('s15c', 15)]
                else: seq += [('s11', 11), ('s12', 12), ('s13', 13), ('s14', 14), ('s15', 15)]
            else:
                for it in range(5):
                    if it == 0 and item == 1 and o.get('park'): seq += [('s1b', 1), ('s2b', 2)]
                    else: seq += [('s1', 1 + 2 * it), ('s2', 2 + 2 * it)]
                seq += [('s11', 11), ('s12', 12), ('s13', 13), ('s14', 14), ('s15', 15)]
            for n, j in seq: trace.append((B[n], ctx(item, j, n)))
            if item == 0: trace.append((B['trans'], ctx(1, 0, 'trans')))
        trace.append((B['tail'], ctx(1, 15, 'tail')))
        errs, _ = resolve(trace)
        lin = []
        for blk, c in trace: lin += expand(blk)
        errs += hazards(lin, 'trace')
        rare = {b: self.rare(b) for b in (0, 1)}
        resc = self.rescale()
        blk_of = {'s0a': 'head', 's0b': 'trans'}
        if o.get('d3both'): self.rare_sites = [x for x in self.rare_sites if x[0] not in ('s1', 's2')]
        for site, buf in self.rare_sites:
            blk = expand(B[blk_of.get(site, site)])
            errs += hazards(blk + rare[buf] + resc + expand(B['s1' if buf == 1 else 's2'])[:60], 'rare@' + site)
        out = []
        for n in order: out += expand(B[n])
        for site, buf in self.rare_sites:
            out += [I(f'L_rare_{site}:'), I(f's_call_b64 s[{sRet}:{sRet+1}], L_rarefn_{buf}'), I(f's_branch L_cont_{site}')]
        for b in (0, 1): out += rare[b]
        out += resc
        out.append(I('L_code_end:'))
        return out, errs

HEADER = """; MHA forward (softmax(Q K^T / 16) V), bf16 in / bf16 out, 256 heads x 512 queries x 512 keys x 256 dims, gfx950.
;
; ds_read_b128 / ds_read_b64_tr_b16).  S^T = K Q^T and O^T = V^T P^T use v_mfma_f32_16x16x32_bf16; Q and half of O
; Output: O/l -> bf16 -> LDS transpose -> full-line stores.
; @launch grid=(256,1,1) block=(256,1,1) lds={lds}
.amdgcn_target "amdgcn-amd-amdhsa--gfx950"
.text
.globl {name}
.p2align 8
.type {name},@function
{name}:
"""
FOOTER = """.section .rodata,"a"
.p2align 6
.amdhsa_kernel {name}
  .amdhsa_next_free_vgpr 512
  .amdhsa_next_free_sgpr 96
  .amdhsa_accum_offset 256
  .amdhsa_group_segment_fixed_size 0
  .amdhsa_kernarg_size 48
  .amdhsa_user_sgpr_count 2
  .amdhsa_user_sgpr_kernarg_segment_ptr 1
  .amdhsa_system_sgpr_workgroup_id_x 1
.end_amdhsa_kernel
"""

def generate(opt, path):
    g = Gen(opt)
    body, errs = g.build()
    for e in errs[:40]: print('ERR', e)
    txt = HEADER.format(name=NAME, lds=LDS_BYTES)
    for ins in body:
        txt += (ins.text if ins.kind == 'label' else '    ' + ins.text) + '\n'
    txt += FOOTER.format(name=NAME)
    open(path, 'w').write(txt)
    return g, errs

if __name__ == '__main__':
    opt = json.loads(sys.argv[2]) if len(sys.argv) > 2 else {}
    g, errs = generate(opt, sys.argv[1])
    print('errors:', len(errs))
    for n, c in g.costs.items(): print(n, ''.join(str(x) for x in c), sum(c))
```
